```python
import torch

def _softmax(x, axis=-1):
    return torch.softmax(x, dim=axis)

def _gelu(x):
    return torch.nn.functional.gelu(x, approximate='tanh')

def _silu(x):
    return torch.nn.functional.silu(x)

def _sigmoid(x):
    return torch.sigmoid(x)

def _layernorm(x, axis=-1, eps=1e-05):
    m = x.mean(dim=axis, keepdim=True)
    v = x.var(dim=axis, keepdim=True, unbiased=False)
    return (x - m) / torch.sqrt(v + eps)

def _scatter_add(tgt, idx, src, axis=0):
    return tgt.clone().index_add_(axis, idx, src)

def _segment_sum(src, seg, n):
    out = torch.zeros((n,) + src.shape[1:], dtype=src.dtype)
    return out.index_add_(0, seg, src)

def _pad(x, pw):
    flat = tuple((v for pair in reversed(pw) for v in pair))
    return torch.nn.functional.pad(x, flat)
kernel_name = 'recurrent_scan__sliding_block__mixer_gmlp__prompt'

def setup_inputs():

    _w = lambda a: (lambda t: t.to(torch.bfloat16) if t.is_floating_point() else t)(torch.as_tensor(a))

    def _A_setup():
        B, S, D = (1, 2048, 576)
        return {'x': _w((lambda *s: torch.randn(*s, dtype=torch.bfloat16) * 0.05)(B, S, D)), 'wqkv': _w((lambda *s: torch.randn(*s, dtype=torch.bfloat16) * 0.05)(D, 3 * D)), 'wo': _w((lambda *s: torch.randn(*s, dtype=torch.bfloat16) * 0.05)(D, D))}
    _A_in = _A_setup()

    def _B_setup():
        B, S, D, F = (1, 2048, 576, 4608)
        Fh = F // 2
        return {'x': _w((lambda *s: torch.randn(*s, dtype=torch.bfloat16) * 0.05)(B, S, D)), 'w_in': _w((lambda *s: torch.randn(*s, dtype=torch.bfloat16) * 0.4)(D, 2 * Fh)), 'w_sp': _w(0.01 * (lambda *s: torch.randn(*s, dtype=torch.bfloat16) * 0.4)(S, S)), 'b_sp': _w(1.0 + 0.01 * (lambda *s: torch.randn(*s, dtype=torch.bfloat16) * 0.05)(S)), 'w_out': _w((lambda *s: torch.randn(*s, dtype=torch.bfloat16) * 0.05)(Fh, D))}
    _B_in = _B_setup()
    return {'A_x': _A_in['x'], 'A_wqkv': _A_in['wqkv'], 'A_wo': _A_in['wo'], 'B_x': _B_in['x'], 'B_w_in': _B_in['w_in'], 'B_w_sp': _B_in['w_sp'], 'B_b_sp': _B_in['b_sp'], 'B_w_out': _B_in['w_out']}

def reference(A_x, A_wqkv, A_wo, B_x, B_w_in, B_w_sp, B_b_sp, B_w_out):

    def _A_ref(x, wqkv, wo):
        B, S, D = x.shape
        H = 32
        Dh = D // H
        W = 256
        qkv = (lambda x, *d: x.permute(*d))((x @ wqkv).reshape(B, S, 3, H, Dh), 2, 0, 3, 1, 4)
        q, k, v = (qkv[0], qkv[1], qkv[2])
        scores = torch.einsum('bhqd,bhkd->bhqk', q, k) * Dh ** (-0.5)
        idx = torch.arange(S)
        mask = (idx[:, None] - idx[None, :] >= 0) & (idx[:, None] - idx[None, :] < W)
        scores = torch.where(mask[None, None], scores, -1000000000.0)
        p = _softmax(scores, axis=-1)
        o = torch.einsum('bhqk,bhkd->bhqd', p, v)
        return (lambda x, *d: x.permute(*d))(o, 0, 2, 1, 3).reshape(B, S, D) @ wo

    def _B_ref(x, w_in, w_sp, b_sp, w_out):
        B, S, D = x.shape
        F = w_in.shape[-1]
        Fh = F // 2
        z = _gelu(torch.einsum('bsd,df->bsf', x, w_in))
        z1 = z[..., :Fh].clone()
        z2 = _layernorm(z[..., Fh:], axis=-1)
        g = torch.einsum('ts,bsf->btf', w_sp, z2) + b_sp[None, :, None]
        return torch.einsum('bsf,fd->bsd', z1 * g, w_out)
    x = A_x
    xn = _layernorm(x, axis=-1)
    s = _A_ref(xn, A_wqkv, A_wo)
    g = _silu(_B_ref(xn, B_w_in, B_w_sp, B_b_sp, B_w_out))
    return x + s * g
```

```python
class K:
    def __init__(self, name, grid, block, lds, vgpr=256, agpr=0, sgpr=102):
        self.name = name; self.grid = grid; self.block = block; self.lds = lds
        self.vgpr = vgpr; self.agpr = agpr; self.sgpr = sgpr
        self.lines = []
        self.nlab = 0
    def __call__(self, s):
        for l in s.split("\n"):
            l = l.strip()
            if l:
                self.lines.append(("    " + l) if not l.endswith(":") else l)
    def label(self, base="L"):
        self.nlab += 1
        return f"{self.name}_{base}{self.nlab}"
    def srd(self, d, base, nbytes, off=0):
        if off:
            self(f"s_add_u32 s{d}, s{base}, {off}")
            self(f"s_addc_u32 s{d+1}, s{base+1}, 0")
        else:
            self(f"s_mov_b32 s{d}, s{base}")
            self(f"s_mov_b32 s{d+1}, s{base+1}")
        self(f"s_mov_b32 s{d+2}, {nbytes}")
        self(f"s_mov_b32 s{d+3}, 0x20000")
    def text(self):
        o = [f".globl {self.name}", ".p2align 8", f".type {self.name},@function", f"{self.name}:"]
        o += self.lines
        return "\n".join(o) + "\n"
    def desc(self):
        acc = (self.vgpr + 3) // 4 * 4
        nfv = acc + self.agpr if self.agpr else self.vgpr
        return f""".p2align 6
.amdhsa_kernel {self.name}
  .amdhsa_next_free_vgpr {nfv}
  .amdhsa_next_free_sgpr {self.sgpr}
  .amdhsa_accum_offset {acc}
  .amdhsa_group_segment_fixed_size 0
  .amdhsa_kernarg_size 88
  .amdhsa_user_sgpr_count 2
  .amdhsa_user_sgpr_kernarg_segment_ptr 1
  .amdhsa_system_sgpr_workgroup_id_x 1
  .amdhsa_float_denorm_mode_32 3
  .amdhsa_float_denorm_mode_16_64 3
  .amdhsa_ieee_mode 0
  .amdhsa_dx10_clamp 0
.end_amdhsa_kernel
"""
    def launch(self):
        g, b = self.grid, self.block
        return f"; @launch kernel={self.name} grid=({g},1,1) block=({b},1,1) lds={self.lds}"

def emit(kernels, path, header="", order=None):
    order = order or kernels
    o = header
    o += "\n".join(k.launch() for k in order) + "\n"
    o += '.amdgcn_target "amdgcn-amd-amdhsa--gfx950"\n.text\n'
    for k in kernels:
        o += k.text()
    o += '.section .rodata,"a"\n'
    for k in kernels:
        o += k.desc()
    open(path, "w").write(o)

STAMP_OFF = 128 << 20
def stamp_begin(k, s0=90):
    k(f"s_memrealtime s[{s0}:{s0+1}]")
    k(f"s_memtime s[{s0+2}:{s0+3}]")
def stamp_end(k, s0=90, sws=None, vt=0, wgid="s2", stmp=84, kidx=0):
    k(f"s_memrealtime s[{s0+4}:{s0+5}]")
    k(f"s_memtime s[{s0+6}:{s0+7}]")
    k(f"s_load_dwordx2 s[{stmp}:{stmp+1}], s[0:1], 80")
    k("s_waitcnt lgkmcnt(0)")
    k(f"s_lshl_b32 s{stmp+2}, {wgid}, 5")
    k(f"s_add_u32 s{stmp+2}, s{stmp+2}, {STAMP_OFF + kidx * 65536}")
    k(f"s_add_u32 s{stmp}, s{stmp}, s{stmp+2}")
    k(f"s_addc_u32 s{stmp+1}, s{stmp+1}, 0")
    k(f"v_mov_b32 v{vt}, s{s0}")
    k(f"v_mov_b32 v{vt+1}, s{s0+1}")
    k(f"v_mov_b32 v{vt+2}, s{s0+4}")
    k(f"v_mov_b32 v{vt+3}, s{s0+5}")
    k(f"v_mov_b32 v{vt+4}, s{s0+2}")
    k(f"v_mov_b32 v{vt+5}, s{s0+3}")
    k(f"v_mov_b32 v{vt+6}, s{s0+6}")
    k(f"v_mov_b32 v{vt+7}, s{s0+7}")
    k(f"v_mov_b32 v{vt+8}, 0")
    k(f"global_store_dwordx4 v{vt+8}, v[{vt}:{vt+3}], s[{stmp}:{stmp+1}]")
    k(f"global_store_dwordx4 v{vt+8}, v[{vt+4}:{vt+7}], s[{stmp}:{stmp+1}] offset:16")
    k("s_waitcnt vmcnt(0)")
```

```python
import sys
from asmlib import *
XN, WQKVT, WINT, WOT, WOUTT, QKV, Z, Z2NT, O, H, S = 0, 0x400000, 0x800000, 0xE00000, 0x1000000, 0x1400000, 0x1C00000, 0x3000000, 0x3A00000, 0x3E00000, 0x4800000
ARG = dict(x=0, wqkv=8, wo=16, bx=24, win=32, wsp=40, bsp=48, wout=56, out=64, dbg=72, ws=80)

def srd(k, d, src, nbytes, tmp=4):
    if src[0] == 'arg':
        k(f"s_load_dwordx2 s[{tmp}:{tmp+1}], s[0:1], {ARG[src[1]]}")
        k("s_waitcnt lgkmcnt(0)")
        k.srd(d, tmp, nbytes)
    else:
        k(f"s_load_dwordx2 s[{tmp}:{tmp+1}], s[0:1], 80")
        k("s_waitcnt lgkmcnt(0)")
        k.srd(d, tmp, nbytes, off=src[1])

def wave_sum(k, v, t):
    for off in (0x041F, 0x081F, 0x101F, 0x201F, 0x401F):
        k(f"ds_swizzle_b32 v{t}, v{v} offset:{off}")
        k("s_waitcnt lgkmcnt(0)")
        k(f"v_add_f32 v{v}, v{v}, v{t}")
    k("s_nop 1")
    k(f"v_readlane_b32 s40, v{v}, 0")
    k(f"v_readlane_b32 s41, v{v}, 32")
    k("s_nop 3")
    k(f"v_mov_b32 v{v}, s40")
    k(f"v_add_f32 v{v}, s41, v{v}")

def ln_kernel(name, src, src_ld, col0, L, dst, transposed):
    k = K(name, 512, 256, 0, vgpr=96)
    k("s_cmp_ge_u32 s2, 512"); k(f"s_cbranch_scc1 {name}_end")
    srd(k, 8, src, 2048 * src_ld * 2)
    srd(k, 12, dst, 2048 * L * 2)
    k("v_lshrrev_b32 v1, 6, v0"); k("s_nop 0"); k("v_readfirstlane_b32 s20, v1")
    k("s_lshl_b32 s21, s2, 2"); k("s_add_u32 s20, s20, s21")
    k("v_and_b32 v2, 63, v0")
    nd = L // 2; n = (nd + 63) // 64
    k(f"s_mul_i32 s22, s20, {src_ld*2}"); k(f"s_add_u32 s22, s22, {col0*2}")
    k("v_lshlrev_b32 v3, 2, v2")
    for i in range(n):
        k(f"v_add_u32 v4, {i*256}, v3")
        k(f"buffer_load_dword v{10+i}, v4, s[8:11], s22 offen")
    k("s_waitcnt vmcnt(0)")
    part = nd % 64
    if part:
        k(f"v_cmp_gt_u32 vcc, {part}, v2"); k("s_nop 1")
        k(f"v_cndmask_b32 v{10+n-1}, 0, v{10+n-1}, vcc")
    k("v_mov_b32 v5, 0")
    for i in range(n):
        k(f"v_lshlrev_b32 v{40+2*i}, 16, v{10+i}")
        k(f"v_and_b32 v{41+2*i}, 0xffff0000, v{10+i}")
        k(f"v_add_f32 v5, v5, v{40+2*i}"); k(f"v_add_f32 v5, v5, v{41+2*i}")
    wave_sum(k, 5, 6)
    k(f"v_mul_f32 v5, {1.0/L!r}, v5")
    k("v_mov_b32 v7, 0")
    for i in range(2*n):
        k(f"v_sub_f32 v{40+i}, v{40+i}, v5")
    if part:
        k(f"v_cmp_gt_u32 vcc, {part}, v2"); k("s_nop 1")
        k(f"v_cndmask_b32 v{40+2*n-2}, 0, v{40+2*n-2}, vcc")
        k(f"v_cndmask_b32 v{40+2*n-1}, 0, v{40+2*n-1}, vcc")
    for i in range(2*n):
        k(f"v_fmac_f32 v7, v{40+i}, v{40+i}")
    wave_sum(k, 7, 6)
    k(f"v_mul_f32 v7, {1.0/L!r}, v7")
    k(f"v_add_f32 v7, {1e-5!r}, v7")
    k("v_rsq_f32 v7, v7"); k("s_nop 0")
    for i in range(n):
        k(f"v_mul_f32 v{40+2*i}, v{40+2*i}, v7"); k(f"v_mul_f32 v{41+2*i}, v{41+2*i}, v7")
        k(f"v_cvt_pk_bf16_f32 v{10+i}, v{40+2*i}, v{41+2*i}")
    if not transposed:
        k(f"s_mul_i32 s23, s20, {L*2}")
        for i in range(n):
            last = (i == n - 1 and part)
            if last:
                k(f"v_cmp_gt_u32 vcc, {part}, v2"); k("s_and_saveexec_b64 s[30:31], vcc")
            k(f"v_add_u32 v4, {i*256}, v3")
            k(f"buffer_store_dword v{10+i}, v4, s[12:15], s23 offen")
    else:
        assert not part
        k("s_lshl_b32 s23, s20, 1")
        k("v_lshlrev_b32 v3, 13, v2")
        for i in range(n):
            k(f"v_add_u32 v4, {i*128*4096}, v3")
            k(f"buffer_store_short v{10+i}, v4, s[12:15], s23 offen")
            k(f"v_add_u32 v4, {i*128*4096+4096}, v3")
            k(f"buffer_store_short_d16_hi v{10+i}, v4, s[12:15], s23 offen")
    k("s_waitcnt vmcnt(0)")
    k(f"{name}_end:"); k("s_endpgm")
    return k

def tr_kernel(name, src, R, C, dst):
    tot = R * C
    nb = tot // 256
    k = K(name, nb, 256, 0, vgpr=16)
    k(f"s_cmp_ge_u32 s2, {nb}"); k(f"s_cbranch_scc1 {name}_end")
    srd(k, 8, src, tot * 2); srd(k, 12, dst, tot * 2)
    k("s_lshl_b32 s20, s2, 8"); k("v_add_u32 v1, s20, v0")
    magic = (2**32 + R - 1) // R
    k(f"s_mov_b32 s21, {magic}"); k("v_mul_hi_u32 v2, v1, s21")
    k(f"s_mov_b32 s22, {R}"); k("v_mul_lo_u32 v3, v2, s22"); k("v_sub_u32 v3, v1, v3")
    k(f"s_mov_b32 s22, {C}"); k("v_mul_lo_u32 v4, v3, s22"); k("v_add_u32 v4, v4, v2"); k("v_lshlrev_b32 v4, 1, v4")
    k("buffer_load_ushort v5, v4, s[8:11], 0 offen")
    k("v_lshlrev_b32 v1, 1, v1")
    k("s_waitcnt vmcnt(0)")
    k("buffer_store_short v5, v1, s[12:15], 0 offen")
    k("s_waitcnt vmcnt(0)")
    k(f"{name}_end:"); k("s_endpgm")
    import numpy as np
    i = np.arange(tot, dtype=np.uint64)
    assert np.all((i * magic) >> 32 == i // R)
    return k

LOG2E = 1.4426950408889634
def gelu(k, x, t):
    c0 = -2 * 0.7978845608028654 * LOG2E
    c1 = c0 * 0.044715
    k(f"v_mul_f32 v{t}, v{x}, v{x}")
    k(f"v_mov_b32 v{t+1}, {c0!r}")
    k(f"v_fmac_f32 v{t+1}, {c1!r}, v{t}")
    k(f"v_mul_f32 v{t}, v{t+1}, v{x}")
    k(f"v_exp_f32 v{t}, v{t}"); k("s_nop 0")
    k(f"v_add_f32 v{t}, 1.0, v{t}")
    k(f"v_rcp_f32 v{t}, v{t}"); k("s_nop 0")
    k(f"v_mul_f32 v{x}, v{x}, v{t}")

def gemm_kernel(name, Wt, N, X, Kd, dst, ldc, epi):
    tn = N // 64; tm = 32
    nwaves = tn * tm
    nb = nwaves // 4
    k = K(name, nb, 256, 0, vgpr=128)
    k(f"s_cmp_ge_u32 s2, {nb}"); k(f"s_cbranch_scc1 {name}_end")
    srd(k, 8, Wt, N * Kd * 2); srd(k, 12, X, 2048 * Kd * 2); srd(k, 16, dst, 2048 * ldc * 2)
    if epi == 'h':
        srd(k, 20, ('ws', Z), 2048 * 4608 * 2); srd(k, 24, ('arg', 'bsp'), 4096)
    if epi == 'final':
        srd(k, 20, ('ws', S), 2048 * 576 * 2); srd(k, 24, ('arg', 'x'), 2048 * 576 * 2)
    k("v_lshrrev_b32 v1, 6, v0"); k("s_nop 0"); k("v_readfirstlane_b32 s30, v1")
    k("s_lshl_b32 s31, s2, 2"); k("s_add_u32 s30, s30, s31")
    k("s_and_b32 s31, s30, 31")
    k("s_lshr_b32 s32, s30, 5")
    k("v_and_b32 v2, 31, v0"); k("v_bfe_u32 v3, v0, 5, 1")
    k(f"v_mul_u32_u24 v4, {Kd*2}, v2"); k("v_lshl_add_u32 v4, v3, 4, v4")
    k(f"v_add_u32 v5, {32*Kd*2}, v4")
    k(f"s_mul_i32 s33, s32, {64*Kd*2}"); k(f"s_mul_i32 s34, s31, {64*Kd*2}")
    for r in range(64): k(f"v_mov_b32 v{64+r}, 0")
    k("s_mov_b32 s35, 0")
    k(f"{name}_loop:")
    for u in range(2):
        k(f"buffer_load_dwordx4 v[{8+16*u}:{11+16*u}], v4, s[8:11], s33 offen offset:{32*u}")
        k(f"buffer_load_dwordx4 v[{12+16*u}:{15+16*u}], v5, s[8:11], s33 offen offset:{32*u}")
        k(f"buffer_load_dwordx4 v[{16+16*u}:{19+16*u}], v4, s[12:15], s34 offen offset:{32*u}")
        k(f"buffer_load_dwordx4 v[{20+16*u}:{23+16*u}], v5, s[12:15], s34 offen offset:{32*u}")
    for u in range(2):
        k(f"s_waitcnt vmcnt({4*(1-u)})")
        for a in range(2):
            for b in range(2):
                c = 64 + 16 * (2 * a + b)
                k(f"v_mfma_f32_32x32x16_bf16 v[{c}:{c+15}], v[{8+16*u+4*a}:{11+16*u+4*a}], v[{16+16*u+4*b}:{19+16*u+4*b}], v[{c}:{c+15}]")
    k("s_add_u32 s33, s33, 64"); k("s_add_u32 s34, s34, 64")
    k("s_add_u32 s35, s35, 32"); k(f"s_cmp_lt_u32 s35, {Kd}"); k(f"s_cbranch_scc1 {name}_loop")
    k("s_nop 15"); k("s_nop 7")
    k("s_lshl_b32 s36, s31, 6"); k("s_lshl_b32 s37, s32, 6")
    for b in range(2):
        k(f"v_add_u32 v6, s36, v2")
        if b: k("v_add_u32 v6, 32, v6")
        k(f"s_mov_b32 s38, {ldc*2}"); k("v_mul_lo_u32 v7, v6, s38")
        k("v_lshl_add_u32 v7, v3, 3, v7")
        k("s_lshl_b32 s39, s37, 1")
        k("v_add_u32 v7, s39, v7")
        if epi == 'h':
            k("s_mov_b32 s38, 9216"); k("v_mul_lo_u32 v40, v6, s38"); k("v_lshl_add_u32 v40, v3, 3, v40"); k("v_add_u32 v40, s39, v40")
            k("v_lshlrev_b32 v41, 1, v6")
            k("buffer_load_ushort v42, v41, s[24:27], 0 offen")
            k("s_waitcnt vmcnt(0)")
            k("v_lshlrev_b32 v42, 16, v42")
        for a in range(2):
            for g in range(4):
                c = 64 + 16 * (2 * a + b) + 4 * g
                off = (a * 32 + 8 * g) * 2
                if epi == 'gelu':
                    for j in range(4): gelu(k, c + j, 44)
                if epi == 'h':
                    k(f"buffer_load_dwordx2 v[44:45], v40, s[20:23], 0 offen offset:{off}")
                    k("s_waitcnt vmcnt(0)")
                    for j in range(4):
                        if j % 2 == 0: k(f"v_lshlrev_b32 v46, 16, v{44+j//2}")
                        else: k(f"v_and_b32 v46, 0xffff0000, v{44+j//2}")
                        k(f"v_add_f32 v{c+j}, v{c+j}, v42")
                        k(f"v_mul_f32 v{c+j}, v{c+j}, v46")
                if epi == 'final':
                    k(f"buffer_load_dwordx2 v[44:45], v7, s[20:23], 0 offen offset:{off}")
                    k(f"buffer_load_dwordx2 v[48:49], v7, s[24:27], 0 offen offset:{off}")
                    k("s_waitcnt vmcnt(0)")
                    for j in range(4):
                        if j % 2 == 0:
                            k(f"v_lshlrev_b32 v46, 16, v{44+j//2}"); k(f"v_lshlrev_b32 v47, 16, v{48+j//2}")
                        else:
                            k(f"v_and_b32 v46, 0xffff0000, v{44+j//2}"); k(f"v_and_b32 v47, 0xffff0000, v{48+j//2}")
                        k(f"v_mul_f32 v50, {-LOG2E!r}, v{c+j}")
                        k("v_exp_f32 v50, v50"); k("s_nop 0"); k("v_add_f32 v50, 1.0, v50"); k("v_rcp_f32 v50, v50"); k("s_nop 0")
                        k(f"v_mul_f32 v50, v50, v{c+j}")
                        k(f"v_fma_f32 v{c+j}, v46, v50, v47")
                k(f"v_cvt_pk_bf16_f32 v52, v{c}, v{c+1}"); k(f"v_cvt_pk_bf16_f32 v53, v{c+2}, v{c+3}")
                k(f"buffer_store_dwordx2 v[52:53], v7, s[16:19], 0 offen offset:{off}")
                k("s_waitcnt vmcnt(0)")
    k(f"{name}_end:"); k("s_endpgm")
    return k

def attn_kernel(name):
    k = K(name, 256, 256, 0, vgpr=128)
    k("s_cmp_ge_u32 s2, 256"); k(f"s_cbranch_scc1 {name}_end")
    srd(k, 8, ('ws', QKV), 2048 * 1728 * 2); srd(k, 12, ('ws', O), 2048 * 576 * 2)
    k("s_lshr_b32 s20, s2, 3")
    k("s_and_b32 s21, s2, 7"); k("s_lshl_b32 s21, s21, 8")
    k("v_add_u32 v1, s21, v0")
    k("s_mul_i32 s22, s20, 36")
    k("s_add_u32 s23, s22, 1152"); k("s_add_u32 s24, s22, 2304")
    k("v_mul_u32_u24 v2, 3456, v1")
    def load9(dst, vo, so):
        k(f"buffer_load_dwordx4 v[{dst}:{dst+3}], v{vo}, s[8:11], s{so} offen")
        k(f"buffer_load_dwordx4 v[{dst+4}:{dst+7}], v{vo}, s[8:11], s{so} offen offset:16")
        k(f"buffer_load_dword v{dst+8}, v{vo}, s[8:11], s{so} offen offset:32")
    load9(8, 2, 22)
    k("s_waitcnt vmcnt(0)")
    sc = 18 ** -0.5 * LOG2E
    for i in range(9):
        k(f"v_lshlrev_b32 v{40+2*i}, 16, v{8+i}"); k(f"v_and_b32 v{41+2*i}, 0xffff0000, v{8+i}")
        k(f"v_mul_f32 v{40+2*i}, {sc!r}, v{40+2*i}"); k(f"v_mul_f32 v{41+2*i}, {sc!r}, v{41+2*i}")
    for i in range(18): k(f"v_mov_b32 v{60+i}, 0")
    k("v_mov_b32 v80, 0xff7fffff"); k("v_mov_b32 v81, 0")
    k("s_mov_b32 s25, 0")
    k(f"{name}_loop:")
    k("v_subrev_u32 v3, s25, v1")
    k("v_cmp_le_i32 vcc, 0, v3");
    k("v_max_i32 v3, 0, v3")
    k("v_mul_u32_u24 v4, 3456, v3")
    load9(8, 4, 23); load9(20, 4, 24)
    k("s_waitcnt vmcnt(0)")
    k("v_mov_b32 v82, 0")
    for i in range(9):
        k(f"v_lshlrev_b32 v5, 16, v{8+i}"); k(f"v_fmac_f32 v82, v5, v{40+2*i}")
        k(f"v_and_b32 v5, 0xffff0000, v{8+i}"); k(f"v_fmac_f32 v82, v5, v{41+2*i}")
    k("v_mov_b32 v5, 0xff7fffff")
    k("v_cndmask_b32 v82, v5, v82, vcc")
    k("v_max_f32 v83, v80, v82")
    k("v_sub_f32 v84, v80, v83"); k("v_exp_f32 v84, v84")
    k("v_sub_f32 v85, v82, v83"); k("v_exp_f32 v85, v85"); k("s_nop 0")
    k("v_cndmask_b32 v85, 0, v85, vcc")
    k("v_mov_b32 v80, v83")
    k("v_fma_f32 v81, v81, v84, v85")
    for i in range(9):
        k(f"v_lshlrev_b32 v5, 16, v{20+i}"); k(f"v_mul_f32 v{60+2*i}, v{60+2*i}, v84"); k(f"v_fmac_f32 v{60+2*i}, v5, v85")
        k(f"v_and_b32 v5, 0xffff0000, v{20+i}"); k(f"v_mul_f32 v{61+2*i}, v{61+2*i}, v84"); k(f"v_fmac_f32 v{61+2*i}, v5, v85")
    k("s_add_u32 s25, s25, 1"); k("s_cmp_lt_u32 s25, 256"); k(f"s_cbranch_scc1 {name}_loop")
    k("v_rcp_f32 v81, v81"); k("s_nop 0")
    for i in range(9):
        k(f"v_mul_f32 v{60+2*i}, v{60+2*i}, v81"); k(f"v_mul_f32 v{61+2*i}, v{61+2*i}, v81")
        k(f"v_cvt_pk_bf16_f32 v{8+i}, v{60+2*i}, v{61+2*i}")
    k("v_mul_u32_u24 v2, 1152, v1")
    k("buffer_store_dwordx4 v[8:11], v2, s[12:15], s22 offen")
    k("buffer_store_dwordx4 v[12:15], v2, s[12:15], s22 offen offset:16")
    k("buffer_store_dword v16, v2, s[12:15], s22 offen offset:32")
    k("s_waitcnt vmcnt(0)")
    k(f"{name}_end:"); k("s_endpgm")
    return k

def empty_kernel(name, grid=256):
    k = K(name, grid, 256, 0, vgpr=8)
    k("s_endpgm")
    return k

ks = [
    ln_kernel("ln1_kernel", ('arg', 'x'), 576, 0, 576, ('ws', XN), False),
    tr_kernel("t1_kernel", ('arg', 'wqkv'), 576, 1728, ('ws', WQKVT)),
    tr_kernel("t2_kernel", ('arg', 'win'), 576, 4608, ('ws', WINT)),
    tr_kernel("t3_kernel", ('arg', 'wo'), 576, 576, ('ws', WOT)),
    tr_kernel("t4_kernel", ('arg', 'wout'), 2304, 576, ('ws', WOUTT)),
    gemm_kernel("g1_kernel", ('ws', WQKVT), 1728, ('ws', XN), 576, ('ws', QKV), 1728, 'store'),
    gemm_kernel("g2_kernel", ('ws', WINT), 4608, ('ws', XN), 576, ('ws', Z), 4608, 'gelu'),
    ln_kernel("ln2_kernel", ('ws', Z), 4608, 2304, 2304, ('ws', Z2NT), True),
    attn_kernel("at_kernel"),
    gemm_kernel("g3_kernel", ('ws', Z2NT), 2304, ('arg', 'wsp'), 2048, ('ws', H), 2304, 'h'),
    gemm_kernel("g4_kernel", ('ws', WOT), 576, ('ws', O), 576, ('ws', S), 576, 'store'),
    gemm_kernel("g5_kernel", ('ws', WOUTT), 576, ('ws', H), 2304, ('arg', 'out'), 576, 'final'),
]
if __name__ == "__main__":
    nempty = int(sys.argv[2]) if len(sys.argv) > 2 else 0
    e = empty_kernel("e_kernel")
    order = list(ks) + [e] * nempty
    emit(ks + ([e] if nempty else []), sys.argv[1], order=order)
```

```python
import naive, sys
from asmlib import *
def probe(name, src, per_wg_kb, amp=50, off=0):
    k = K(name, 256, 256, 0, vgpr=128)
    k("s_cmp_ge_u32 s2, 256"); k(f"s_cbranch_scc1 {name}_end")
    naive.srd(k, 8, src, 256 * per_wg_kb * 1024)
    k("v_lshlrev_b32 v1, 4, v0")
    k(f"s_mul_i32 s20, s2, {per_wg_kb*1024}")
    k("s_memrealtime s[30:31]")
    k("s_waitcnt lgkmcnt(0)")
    n = per_wg_kb // 4
    for i in range(n):
        k(f"buffer_load_dwordx4 v[{8+4*(i%16)}:{11+4*(i%16)}], v1, s[8:11], s20 offen")
        k("s_add_u32 s20, s20, 4096")
    k("s_waitcnt vmcnt(0)")
    k("s_memrealtime s[32:33]")
    k("s_waitcnt lgkmcnt(0)")
    k("s_sub_u32 s34, s32, s30")
    k(f"s_mul_i32 s34, s34, {amp}")
    k("s_min_u32 s34, s34, 200000")
    k(f"{name}_spin:")
    k("s_sleep 4")
    k("s_memrealtime s[32:33]")
    k("s_waitcnt lgkmcnt(0)")
    k("s_sub_u32 s35, s32, s30")
    k("s_cmp_lt_u32 s35, s34")
    k(f"s_cbranch_scc1 {name}_spin")
    k(f"{name}_end:"); k("s_endpgm")
    return k
tests = {
 "p_wsp": probe("p_kernel", ('arg', 'wsp'), 32),
 "p_ws0": probe("p_kernel", ('ws', 100 << 20), 32),
 "p_wsend": probe("p_kernel", ('ws', 240 << 20), 32),
 "p_win": probe("p_kernel", ('arg', 'win'), 20),
 "p_x": probe("p_kernel", ('arg', 'x'), 8),
}
for n, p in tests.items():
    emit(naive.ks + [p], n + ".s", order=[p] + list(naive.ks))
p = tests["p_wsp"]
q = probe("q_kernel", ('arg', 'wsp'), 32, amp=1)
emit(naive.ks + [p, q], "p_wsp2.s", order=[q, p] + list(naive.ks))
```

```python
class K:
    def __init__(self, name, grid, block, lds, vgpr=256, agpr=0, sgpr=102):
        self.name = name; self.grid = grid; self.block = block; self.lds = lds
        self.vgpr = vgpr; self.agpr = agpr; self.sgpr = sgpr
        self.lines = []
        self.nlab = 0
    def __call__(self, s):
        for l in s.split("\n"):
            l = l.strip()
            if l:
                self.lines.append(("    " + l) if not l.endswith(":") else l)
    def label(self, base="L"):
        self.nlab += 1
        return f"{self.name}_{base}{self.nlab}"
    def srd(self, d, base, nbytes, off=0):
        if off:
            self(f"s_add_u32 s{d}, s{base}, {off}")
            self(f"s_addc_u32 s{d+1}, s{base+1}, 0")
        else:
            self(f"s_mov_b32 s{d}, s{base}")
            self(f"s_mov_b32 s{d+1}, s{base+1}")
        self(f"s_mov_b32 s{d+2}, {nbytes}")
        self(f"s_mov_b32 s{d+3}, 0x20000")
    def text(self):
        o = [f".globl {self.name}", ".p2align 8", f".type {self.name},@function", f"{self.name}:"]
        o += self.lines
        return "\n".join(o) + "\n"
    def desc(self):
        acc = (self.vgpr + 3) // 4 * 4
        nfv = acc + self.agpr if self.agpr else self.vgpr
        return f""".p2align 6
.amdhsa_kernel {self.name}
  .amdhsa_next_free_vgpr {nfv}
  .amdhsa_next_free_sgpr {self.sgpr}
  .amdhsa_accum_offset {acc}
  .amdhsa_group_segment_fixed_size 0
  .amdhsa_kernarg_size 88
  .amdhsa_user_sgpr_count 2
  .amdhsa_user_sgpr_kernarg_segment_ptr 1
  .amdhsa_system_sgpr_workgroup_id_x 1
  .amdhsa_float_denorm_mode_32 3
  .amdhsa_float_denorm_mode_16_64 3
  .amdhsa_ieee_mode 0
  .amdhsa_dx10_clamp 0
.end_amdhsa_kernel
"""
    def launch(self):
        g, b = self.grid, self.block
        return f"; @launch kernel={self.name} grid=({g},1,1) block=({b},1,1) lds={self.lds}"

def emit(kernels, path, header="", order=None):
    order = order or kernels
    o = header
    o += "\n".join(k.launch() for k in order) + "\n"
    o += '.amdgcn_target "amdgcn-amd-amdhsa--gfx950"\n.text\n'
    for k in kernels:
        o += k.text()
    o += 'code_end:\n.section .rodata,"a"\n'
    for k in kernels:
        o += k.desc()
    open(path, "w").write(o)

STAMP_OFF = 128 << 20
def stamp_begin(k, s0=90):
    k(f"s_memrealtime s[{s0}:{s0+1}]")
    k(f"s_memtime s[{s0+2}:{s0+3}]")
def stamp_end(k, s0=90, sws=None, vt=0, wgid="s2", stmp=84, kidx=0):
    k(f"s_memrealtime s[{s0+4}:{s0+5}]")
    k(f"s_memtime s[{s0+6}:{s0+7}]")
    k(f"s_load_dwordx2 s[{stmp}:{stmp+1}], s[0:1], 80")
    k("s_waitcnt lgkmcnt(0)")
    k(f"s_lshl_b32 s{stmp+2}, {wgid}, 5")
    k(f"s_add_u32 s{stmp+2}, s{stmp+2}, {STAMP_OFF + kidx * 65536}")
    k(f"s_add_u32 s{stmp}, s{stmp}, s{stmp+2}")
    k(f"s_addc_u32 s{stmp+1}, s{stmp+1}, 0")
    k(f"v_mov_b32 v{vt}, s{s0}")
    k(f"v_mov_b32 v{vt+1}, s{s0+1}")
    k(f"v_mov_b32 v{vt+2}, s{s0+4}")
    k(f"v_mov_b32 v{vt+3}, s{s0+5}")
    k(f"v_mov_b32 v{vt+4}, s{s0+2}")
    k(f"v_mov_b32 v{vt+5}, s{s0+3}")
    k(f"v_mov_b32 v{vt+6}, s{s0+6}")
    k(f"v_mov_b32 v{vt+7}, s{s0+7}")
    k(f"v_mov_b32 v{vt+8}, 0")
    k(f"global_store_dwordx4 v{vt+8}, v[{vt}:{vt+3}], s[{stmp}:{stmp+1}]")
    k(f"global_store_dwordx4 v{vt+8}, v[{vt+4}:{vt+7}], s[{stmp}:{stmp+1}] offset:16")
    k("s_waitcnt vmcnt(0)")

MARK_OFF = STAMP_OFF + (512 << 10)
def marks_out(k, sregs, kidx, vt=20, stmp=84, s0=90, wsel=None):
    k("s_waitcnt lgkmcnt(0)")
    k(f"s_load_dwordx2 s[{stmp}:{stmp+1}], s[0:1], 80")
    k(f"v_mov_b32 v{vt}, 0")
    for i, r in enumerate(sregs):
        k(f"s_sub_u32 s{stmp+2}, s{r}, s{s0+2}")
        k(f"v_writelane_b32 v{vt}, s{stmp+2}, {i}")
    k("s_waitcnt lgkmcnt(0)")
    k(f"s_lshl_b32 s{stmp+2}, s2, 6")
    k(f"s_add_u32 s{stmp+2}, s{stmp+2}, {MARK_OFF + kidx * 65536}")
    k(f"s_add_u32 s{stmp}, s{stmp}, s{stmp+2}")
    k(f"s_addc_u32 s{stmp+1}, s{stmp+1}, 0")
    k(f"v_mbcnt_lo_u32_b32 v{vt+1}, -1, 0")
    k(f"v_mbcnt_hi_u32_b32 v{vt+1}, -1, v{vt+1}")
    k(f"v_lshlrev_b32 v{vt+1}, 2, v{vt+1}")
    k("s_mov_b64 exec, 0xffff")
    k(f"global_store_dword v{vt+1}, v{vt}, s[{stmp}:{stmp+1}]")
    k("s_mov_b64 exec, -1")
```

```python
from common import *
MARKS = [66, 68, 70, 72, 74, 76, 78, 80, 82]
OOB = 0x7ffffff0

def attn_core(k, S, WTF, nq, sQB0, sHD, mark=lambda i: None, hook=None):
    sQK, sVT, sO = 8, 12, 16
    sMSK = 20
    mp = [20 + 2 * i for i in range(10)] + [46 + 2 * i for i in range(6)]
    sMA, sMB, sA, sB, sC = 58, 59, 60, 61, 62
    vM, vE, vV, vV2, vO, vO2, vOne, vNeg = 2, 3, 4, 5, 6, 7, 8, 9
    NR = 10 if nq > 1 else 9
    KR, VR, QR, SA, SB, NM, OA, MK, T = 16, 76, 156, 172, 188, 204, 220, 236, 244
    k.srd(sQK, 74, QK_SZ, off=QK); k.srd(sVT, 74, VT_SZ, off=VT); k.srd(sO, 74, O_SZ, off=O)
    k("v_and_b32 v10, 31, v1"); k("v_lshrrev_b32 v11, 5, v1")
    k(f"s_lshr_b32 s{sA}, s{sHD}, 1"); k(f"s_mul_i32 s{sA}, s{sA}, 9")
    k(f"s_and_b32 s{sB}, s{sHD}, 1"); k(f"s_mul_i32 s{sC}, s{sB}, 5"); k(f"s_add_u32 s{sC}, s{sC}, s{sA}"); k(f"s_lshl_b32 s{sC}, s{sC}, 8")
    k("v_lshlrev_b32 v12, 3, v10"); k(f"v_lshl_add_u32 v{vM}, v11, 9, v12"); k(f"v_add_u32 v{vM}, s{sC}, v{vM}")
    k(f"s_add_u32 s{sA}, s{sA}, 4"); k(f"s_lshl_b32 s{sA}, s{sA}, 8"); k(f"v_add_u32 v{vE}, s{sA}, v12")
    k("v_cmp_eq_u32 vcc, 0, v11"); k(f"v_mov_b32 v13, {OOB}"); k(f"v_cndmask_b32 v{vE}, v13, v{vE}, vcc")
    k(f"s_cmp_eq_u32 s{sB}, 0"); k(f"s_cselect_b32 s{sMA}, -1, 0"); k(f"s_cselect_b32 s{sMB}, 0, -1")
    def kb_soff(j, mul, dst, add=0):
        k(f"s_add_i32 s{dst}, s{sQB0}, {j - 8}"); k(f"s_max_i32 s{dst}, s{dst}, 0"); k(f"s_mul_i32 s{dst}, s{dst}, {mul}")
        if add: k(f"s_add_u32 s{dst}, s{dst}, {add}")
    def loadQ(i):
        r = QR + 8 * (i % 2)
        kb_soff(8 + i, 73728, sA)
        S.vmem(f"buffer_load_dwordx2 v[{r+4}:{r+5}], v{vM}, s[{sQK}:{sQK+3}], s{sA} offen", ('Q', i))
        S.vmem(f"buffer_load_dwordx2 v[{r+6}:{r+7}], v{vM}, s[{sQK}:{sQK+3}], s{sA} offen offset:256", ('Q', i))
        S.vmem(f"buffer_load_dwordx2 v[{r}:{r+1}], v{vE}, s[{sQK}:{sQK+3}], s{sA} offen", ('Q', i))
    def loadK(j):
        r = KR + 6 * (j % NR)
        kb_soff(j, 73728, sA, 144 * 256)
        S.vmem(f"buffer_load_dwordx2 v[{r+2}:{r+3}], v{vM}, s[{sQK}:{sQK+3}], s{sA} offen", ('K', j))
        S.vmem(f"buffer_load_dwordx2 v[{r+4}:{r+5}], v{vM}, s[{sQK}:{sQK+3}], s{sA} offen offset:256", ('K', j))
        S.vmem(f"buffer_load_dwordx2 v[{r}:{r+1}], v{vE}, s[{sQK}:{sQK+3}], s{sA} offen", ('K', j))
    def loadV(j):
        r = VR + 8 * (j % NR)
        kb_soff(j, 4 * VSLAB, sA)
        S.vmem(f"buffer_load_dwordx4 v[{r}:{r+3}], v{vV}, s[{sVT}:{sVT+3}], s{sA} offen", ('V', j))
        S.vmem(f"buffer_load_dwordx4 v[{r+4}:{r+7}], v{vV2}, s[{sVT}:{sVT+3}], s{sA} offen", ('V', j))
    loadQ(0)
    order1 = [0, 8, 1, 2, 3, 4, 5, 6, 7]
    for j in order1: loadK(j)
    if hook: hook()
    k(f"s_mul_i32 s{sC}, s{sHD}, 18"); k(f"v_add_u32 v12, s{sC}, v10"); k("v_mov_b32 v14, 576")
    k("v_cmp_gt_u32 vcc, 18, v10"); k("v_cndmask_b32 v12, v14, v12, vcc"); k("v_lshlrev_b32 v12, 4, v12")
    k(f"v_mul_u32_u24 v14, {VSLAB}, v11"); k(f"v_add_u32 v{vV}, v12, v14"); k(f"v_add_u32 v{vV2}, {2*VSLAB}, v{vV}")
    vq = [1, 2, 3, 4, 5, 6, 7, 0, 8]
    k("v_bfe_u32 v12, v1, 4, 1"); k("v_mul_u32_u24 v12, 18432, v12"); k("v_and_b32 v14, 15, v1"); k("v_lshl_add_u32 v12, v14, 4, v12")
    k(f"s_lshl_b32 s{sC}, s{sHD}, 9"); k(f"v_lshl_add_u32 v{vO}, v11, 8, v12"); k(f"v_add_u32 v{vO}, s{sC}, v{vO}")
    k(f"s_lshr_b32 s{sC}, s{sHD}, 2"); k(f"s_add_u32 s{sC}, s{sC}, 64"); k(f"s_lshl_b32 s{sC}, s{sC}, 8")
    k(f"s_and_b32 s{sB}, s{sHD}, 3"); k(f"s_lshl_b32 s{sB}, s{sB}, 2"); k(f"s_add_u32 s{sC}, s{sC}, s{sB}")
    k(f"v_add_u32 v{vO2}, s{sC}, v12"); k("v_cmp_eq_u32 vcc, 0, v11"); k(f"v_cndmask_b32 v{vO2}, v13, v{vO2}, vcc")
    k(f"v_mul_u32_u24 v{vOne}, 0x3f80, v11"); k(f"v_mul_u32_u24 v{vNeg}, 0xff00, v11")
    k("v_lshlrev_b32 v12, 2, v11"); k("v_sub_u32 v12, v10, v12")
    for i in range(16): k(f"v_cmp_le_i32 s[{mp[i]}:{mp[i]+1}], {8*(i//4) + i%4}, v12")
    k("v_mov_b32 v14, 0xffff"); k("v_mov_b32 v15, 0xffff0000")
    for d in range(8):
        k(f"v_cndmask_b32 v{MK+d}, 0, v14, s[{mp[2*d]}:{mp[2*d]+1}]")
        k(f"v_cndmask_b32 v{T}, 0, v15, s[{mp[2*d+1]}:{mp[2*d+1]+1}]")
        k(f"v_or_b32 v{MK+d}, v{MK+d}, v{T}")
    for i in range(2):
        k(f"v_mov_b32 v{QR+8*i+2}, 0"); k(f"v_mov_b32 v{QR+8*i+3}, 0")
    fixedK = set()
    def qk(i, j, D, C):
        b = i + j
        S.wait(vm=('K', b))
        r = KR + 6 * (b % NR); q = QR + 8 * (i % 2)
        if b < 8 and b not in fixedK:
            fixedK.add(b)
            k(f"s_cmp_lt_i32 s{sQB0}, {8 - b}"); k(f"s_cselect_b32 s{sB}, -1, 0")
            k(f"v_and_or_b32 v{r}, v{vNeg}, s{sB}, v{r}")
        k(f"v_mfma_f32_32x32x16_bf16 v[{D}:{D+15}], v[{r+2}:{r+5}], v[{q+4}:{q+7}], {C}")
        k(f"v_mfma_f32_32x32x16_bf16 v[{D}:{D+15}], v[{r}:{r+3}], v[{q}:{q+3}], v[{D}:{D+15}]")
    def mx(D, first):
        a, b = T, T + 1
        if first:
            k(f"v_max3_f32 v{a}, v{D}, v{D+1}, v{D+2}"); k(f"v_max3_f32 v{b}, v{D+3}, v{D+4}, v{D+5}")
            rest = list(range(6, 16))
        else: rest = list(range(16))
        for n in range(0, len(rest), 2):
            t = a if (n // 2) % 2 == 0 else b
            k(f"v_max3_f32 v{t}, v{D+rest[n]}, v{D+rest[n+1]}, v{t}")
    def merge(F, Dg, dst):
        for i in range(16): k(f"v_cndmask_b32 v{dst+i}, v{F+i}, v{Dg+i}, s[{mp[i]}:{mp[i]+1}]")
    def expack(D):
        for h in range(2):
            for i in range(8): k(f"v_exp_f32 v{D+8*h+i}, v{D+8*h+i}")
            if h == 1 or True:
                pass
        for d in range(8): k(f"v_cvt_pk_bf16_f32 v{D+d}, v{D+2*d}, v{D+2*d+1}")
    def pv(i, j, Pr, first):
        b = i + j
        S.wait(vm=('V', b))
        r = VR + 8 * (b % NR)
        k(f"v_mfma_f32_32x32x16_bf16 v[{OA}:{OA+15}], v[{r}:{r+3}], v[{Pr}:{Pr+3}], {'0' if first else f'v[{OA}:{OA+15}]'}")
        k(f"v_mfma_f32_32x32x16_bf16 v[{OA}:{OA+15}], v[{r+4}:{r+7}], v[{Pr+4}:{Pr+7}], v[{OA}:{OA+15}]")
    mark(0)
    for i in range(nq):
        q = QR + 8 * (i % 2)
        S.wait(vm=('Q', i))
        k(f"v_and_or_b32 v{q}, v{q}, s{sMA}, v{vOne}"); k(f"v_and_b32 v{q+1}, s{sMB}, v{q+1}")
        qk(i, 0, SA, "0"); qk(i, 8, SB, "0"); qk(i, 1, NM, "0")
        if i == 0: loadV(vq.pop(0)); loadV(vq.pop(0))
        elif i + 1 < nq: loadQ(i + 1); loadK(9 + i); loadV(9 + i)
        merge(SA, SB, SA)
        qk(i, 2, SB, "0")
        mx(SA, True)
        bufs = [NM, SB, SA]
        for j in range(1, 8):
            if j + 2 <= 7: qk(i, j + 2, bufs[(j + 1) % 3], "0")
            if vq: loadV(vq.pop(0))
            mx(bufs[(j - 1) % 3], False)
        k(f"v_max_f32 v{T}, v{T}, v{T+1}")
        k(f"v_mov_b32 v{T+1}, v{T}")
        k(f"v_permlane32_swap_b32 v{T}, v{T+1}")
        k(f"v_max_f32 v{T}, v{T}, v{T+1}")
        for r in range(16): k(f"v_mul_f32 v{NM+r}, -1.0, v{T}")
        if i == 0: mark(1)
        C = f"v[{NM}:{NM+15}]"
        qk(i, 1, SA, C); qk(i, 2, SB, C)
        if i == 0 and nq > 1: loadQ(1); loadK(9); loadV(9)
        for j in range(1, 8):
            D = SA if j % 2 else SB
            expack(D)
            pv(i, j, D, j == 1)
            nj = j + 2
            if nj <= 7: qk(i, nj, D, C)
            elif nj == 8: qk(i, 0, D, C)
            else: qk(i, 8, D, C)
        merge(SB, SA, SA)
        expack(SA)
        for d in range(8):
            k(f"v_bfi_b32 v{SB+d}, v{MK+d}, 0, v{SA+d}")
            k(f"v_and_b32 v{SA+8+d}, v{MK+d}, v{SA+d}")
        pv(i, 0, SB, False); pv(i, 8, SA + 8, False)
        kb_soff(8 + i, 36864, sC)
        k(f"v_rcp_f32 v{T+2}, v{OA+10}")
        k(f"v_mul_f32 v{T+2}, {fbits(1.0/KAPPA)}, v{T+2}")
        for r in range(10): k(f"v_mul_f32 v{OA+r}, v{OA+r}, v{T+2}")
        for d in range(5): k(f"v_cvt_pk_bf16_f32 v{T+4+d}, v{OA+2*d}, v{OA+2*d+1}")
        S.vmem(f"buffer_store_dwordx4 v[{T+4}:{T+7}], v{vO}, s[{sO}:{sO+3}], s{sC} offen {WTF}")
        S.vmem(f"buffer_store_dword v{T+8}, v{vO2}, s[{sO}:{sO+3}], s{sC} offen {WTF}")
        if i == 0: mark(2)

def wprep(k, WTF, sTask, ntask_waves, sLds):
    sS, sD = 8, 12
    k("s_load_dwordx2 s[20:21], s[0:1], 56"); k("s_load_dwordx2 s[22:23], s[0:1], 16")
    k.srd(sD, 74, WT_SZ, off=WT)
    k("v_lshrrev_b32 v2, 4, v1"); k("v_and_b32 v3, 15, v1")
    k(f"v_mov_b32 v13, {OOB}")
    k("v_mul_u32_u24 v4, 1152, v2"); k("v_lshl_add_u32 v4, v3, 4, v4")
    k("v_lshrrev_b32 v5, 1, v2"); k("v_mul_u32_u24 v5, 18, v5"); k("v_and_b32 v6, 1, v2"); k("v_add_u32 v5, v5, v6")
    k("v_mul_u32_u24 v5, 1152, v5"); k("v_lshl_add_u32 v5, v3, 4, v5")
    k("v_cmp_gt_u32 vcc, 9, v3"); k("v_cndmask_b32 v4, v13, v4, vcc"); k("v_cndmask_b32 v5, v13, v5, vcc")
    k("v_lshlrev_b32 v6, 3, v2"); k("v_bfe_u32 v7, v1, 2, 2"); k("v_add_u32 v6, v6, v7"); k("v_lshlrev_b32 v6, 8, v6")
    k("v_and_b32 v7, 3, v1"); k("v_lshl_add_u32 v6, v7, 3, v6"); k(f"v_add_u32 v6, s{sLds}, v6")
    k("v_lshlrev_b32 v7, 4, v1")
    k("v_lshlrev_b32 v8, 3, v2"); k("v_add_u32 v8, v8, v3"); k("v_lshlrev_b32 v8, 4, v8"); k("v_add_u32 v8, 4096, v8")
    k("v_cmp_gt_u32 vcc, 8, v3"); k("v_cndmask_b32 v8, v13, v8, vcc")
    k("s_waitcnt lgkmcnt(0)")
    lp = k.label("wp"); fin = k.label("wpe"); lp2 = k.label("wq"); fin2 = k.label("wqe")
    k(f"s_mov_b32 s30, s{sTask}"); k(f"s_mov_b32 s31, s{sLds}")
    k(f"{lp}:")
    k(f"s_cmp_ge_u32 s30, 720"); k(f"s_cbranch_scc1 {fin}")
    k(f"s_lshr_b32 s24, s30, 3"); k(f"s_and_b32 s25, s30, 7")
    k("s_cmp_lt_u32 s24, 72")
    k(f"s_cselect_b32 s{sS}, s20, s22"); k(f"s_cselect_b32 s{sS+1}, s21, s23"); k(f"s_cselect_b32 s{sS+2}, {2304*1152}, s{sS+2}")
    k(f"s_cselect_b32 s{sS+2}, s{sS+2}, {576*1152}"); k(f"s_mov_b32 s{sS+3}, 0x20000")
    k("s_mul_i32 s26, s24, 32"); k("s_sub_u32 s27, s24, 72"); k("s_mul_i32 s27, s27, 36"); k("s_sub_u32 s28, s24, 88"); k("s_mul_i32 s28, s28, 288")
    k("s_cmp_lt_u32 s24, 72"); k("s_cselect_b32 s26, s26, s27"); k("s_cselect_b32 s29, 0, 1")
    k("s_cmp_lt_u32 s24, 88"); k("s_cselect_b32 s26, s26, s28"); k("s_cselect_b32 s29, s29, 2"); k("s_cselect_b64 vcc, -1, 0")
    k("s_mul_i32 s26, s26, 1152"); k("s_mul_i32 s27, s25, 144"); k("s_add_u32 s26, s26, s27")
    k("v_cndmask_b32 v9, v5, v4, vcc")
    for i in range(8):
        kg = i >> 1
        o0 = 8 * kg + 4 * ((i & 1) ^ (kg & 1)); o1 = 18 * (kg >> 1) + 4 * (kg & 1) + 8 * (i & 1); o2 = 72 * kg + 36 * (i & 1) + 16
        k("s_cmp_eq_u32 s29, 0"); k(f"s_cselect_b32 s27, {o0}, {o1}")
        k("s_cmp_eq_u32 s29, 2"); k(f"s_cselect_b32 s27, {o2}, s27")
        k(f"s_add_u32 m0, s31, {i*1024}")
        k("s_mul_i32 s27, s27, 1152"); k("s_add_u32 s27, s27, s26")
        k(f"buffer_load_dwordx4 v9, s[{sS}:{sS+3}], s27 offen lds")
    k(f"s_add_u32 s30, s30, {ntask_waves}"); k("s_add_u32 s31, s31, 8192")
    k(f"s_branch {lp}")
    k(f"{fin}:")
    k(f"s_mov_b32 s30, s{sTask}")
    k("s_waitcnt vmcnt(0)")
    nt = -(-720 // ntask_waves)
    for t in range(nt):
        if t:
            k(f"s_add_u32 s30, s30, {ntask_waves}")
            k(f"s_cmp_ge_u32 s30, 720"); k(f"s_cbranch_scc1 {fin2}")
        R = 16 + 20 * t
        for fi in range(5):
            for jj in range(2): k(f"ds_read_b64_tr_b16 v[{R+4*fi+2*jj}:{R+1+4*fi+2*jj}], v6 offset:{t*8192 + jj*1024 + fi*32}")
        k(f"s_lshr_b32 s24, s30, 3"); k(f"s_and_b32 s25, s30, 7")
        k("s_mul_i32 s27, s25, 90"); k("s_add_u32 s27, s27, s24"); k("s_mul_i32 s27, s27, 4608")
        for fi in range(5):
            k(f"s_waitcnt lgkmcnt({8 - 2*fi})")
            if fi < 4: k(f"buffer_store_dwordx4 v[{R+4*fi}:{R+3+4*fi}], v7, s[{sD}:{sD+3}], s27 offen offset:{fi*1024} {WTF}")
            else: k(f"buffer_store_dwordx4 v[{R+4*fi}:{R+3+4*fi}], v8, s[{sD}:{sD+3}], s27 offen {WTF}")
    k(f"{fin2}:")

def attn(k, WTF, prof, opt):
    def mark(i):
        if prof: k(f"{'s_memrealtime' if opt.get('rt') else 's_memtime'} s[{MARKS[i]}:{MARKS[i]+1}]")
    S = Sched(k)
    k("s_sub_u32 s44, s44, 24")
    k("s_lshr_b32 s41, s44, 1"); k("s_lshl_b32 s42, s43, 2"); k("s_add_u32 s41, s41, s42")
    k("s_and_b32 s42, s44, 1"); k("s_lshl_b32 s42, s42, 5"); k("s_lshl_b32 s45, s40, 2"); k("s_add_u32 s42, s42, s45")
    k("s_waitcnt lgkmcnt(0)")
    k("s_cmp_lt_u32 s40, 4"); k("s_cbranch_scc1 k2_at1")
    k("s_sub_u32 s63, s2, 192"); k("s_lshl_b32 s63, s63, 2"); k("s_add_u32 s63, s63, s40"); k("s_sub_u32 s63, s63, 4")
    k("s_sub_u32 s64, s40, 4"); k("s_mul_i32 s64, s64, 24576")
    k("s_barrier")
    wprep(k, WTF, 63, 256, 64)
    k("k2_at1:")
    def hook():
        k("s_cmp_ge_u32 s40, 4"); k("s_cbranch_scc1 k2_at2")
        k("s_barrier")
        k("k2_at2:")
    mark(5)
    attn_core(k, S, WTF, 4, 42, 41, mark, hook)
    mark(3)
```

```python
from asmlib import *
import hazard
ARG = dict(x=0, wqkv=8, wo=16, bx=24, win=32, wsp=40, bsp=48, wout=56, out=64, dbg=72, ws=80)
XN, Z1, Z2N, QK, VT, STATS, H, O, WT = 0, 0x400000, 0xE00000, 0x1800000, 0x1E00000, 0x2100000, 0x2200000, 0x2C00000, 0x3000000
XN_SZ = 2048 * 576 * 2
Z_SZ = 2048 * 2304 * 2
QK_SZ = 64 * 288 * 256
VSLAB = 9344
VT_SZ = 256 * VSLAB
STATS_SZ = 16384 + 4096
O_SZ = 2048 * 576 * 2
WT_SZ = 8 * 90 * 4608
LOG2E = 1.4426950408889634
C0G = 2 * 0.7978845608028654 * LOG2E
KAPPA = (C0G * 0.044715) ** (1.0 / 3)
BETA = C0G / KAPPA
import struct
def fbits(x): return "0x%08x" % struct.unpack("<I", struct.pack("<f", x))[0]

class Sched:
    def __init__(self, k):
        self.k = k
        self.vm = []; self.vm_done = 0
        self.lg = []; self.lg_done = 0
    def __call__(self, s): self.k(s)
    def vmem(self, text, tag=None):
        self.k(text); self.vm.append(tag)
    def lds(self, text, tag=None):
        self.k(text); self.lg.append(tag)
    def _need(self, lst, tags):
        if not isinstance(tags, (list, tuple, set)) or (isinstance(tags, tuple) and not isinstance(tags[0], tuple)): tags = [tags]
        idx = -1
        for t in tags:
            cand = [i for i, x in enumerate(lst) if x == t]
            assert cand, f"tag {t} never issued"
            idx = max(idx, cand[-1])
        return idx + 1
    def wait(self, vm=None, lg=None):
        parts = []
        if vm is not None:
            n = self._need(self.vm, vm)
            if n > self.vm_done:
                c = len(self.vm) - n
                if c > 63: c = 63; n = len(self.vm) - 63
                parts.append(f"vmcnt({c})"); self.vm_done = max(self.vm_done, n)
        if lg is not None:
            n = self._need(self.lg, lg)
            if n > self.lg_done:
                c = len(self.lg) - n
                if c > 15: c = 15; n = len(self.lg) - 15
                parts.append(f"lgkmcnt({c})"); self.lg_done = max(self.lg_done, n)
        if parts: self.k("s_waitcnt " + " ".join(parts))
    def waitall(self, vm=True, lg=True):
        p = []
        if vm: p.append("vmcnt(0)"); self.vm_done = len(self.vm)
        if lg: p.append("lgkmcnt(0)"); self.lg_done = len(self.lg)
        self.k("s_waitcnt " + " ".join(p))

def cost(text):
    op = text.split()[0]
    if op.startswith(hazard.TRANS): return 8
    return 4

class Fill:
    def __init__(self): self.q = []; self.pos = 0
    def v(self, t): self.q.append(('v', t))
    def vm(self, t, tag=None): self.q.append(('vm', t, tag))
    def lds(self, t, tag=None): self.q.append(('lds', t, tag))
    def w(self, **kw): self.q.append(('w', kw))
    def fn(self, f, c=4): self.q.append(('fn', f, c))
    def gap(self, c): self.q.append(('gap', c))
    def icost(self, it):
        if it[0] == 'w': return 4
        if it[0] == 'fn': return it[2]
        if it[0] == 'gap': return it[1]
        return cost(it[1])
    def total(self): return sum(self.icost(i) for i in self.q[self.pos:])
    def emit1(self, S):
        it = self.q[self.pos]; self.pos += 1
        if it[0] == 'v': S(it[1])
        elif it[0] == 'vm': S.vmem(it[1], it[2])
        elif it[0] == 'lds': S.lds(it[1], it[2])
        elif it[0] == 'w': S.wait(**it[1])
        elif it[0] == 'fn': it[1](S)
        return self.icost(it)
    def empty(self): return self.pos >= len(self.q)
    def drain(self, S):
        while not self.empty(): self.emit1(S)

def finish(k, verbose=True):
    rep = []
    k.lines, added = hazard.fix(k.lines, rep)
    if verbose: print(f"{k.name}: {len(k.lines)} lines, nop states added {added} at {len(rep)} sites")
    return rep
```

```python
import re
REG = re.compile(r'\b([vas])(\d+)\b|\b([vas])\[(\d+):(\d+)\]')
TRANS = ("v_exp_f32", "v_log_f32", "v_rcp_f32", "v_rsq_f32", "v_sqrt_f32", "v_sin_f32", "v_cos_f32", "v_rcp_iflag_f32")

def regs(op):
    s = set()
    op = op.strip()
    for m in REG.finditer(op):
        if m.group(1): s.add((m.group(1), int(m.group(2))))
        else:
            for i in range(int(m.group(4)), int(m.group(5)) + 1): s.add((m.group(3), i))
    if re.search(r'\bvcc\b', op): s.add(('s', 'vcc'))
    if re.search(r'\bm0\b', op): s.add(('s', 'm0'))
    if re.search(r'\bexec\b', op): s.add(('s', 'exec'))
    return s

def split_ops(rest):
    out = []; cur = ""; d = 0
    for ch in rest:
        if ch == '[': d += 1
        if ch == ']': d -= 1
        if ch == ',' and d == 0: out.append(cur.strip()); cur = ""
        else: cur += ch
    if cur.strip(): out.append(cur.strip())
    return out

class I:
    def __init__(self, text):
        self.text = text
        t = text.split(';')[0].strip()
        self.label = t.endswith(':') or t.startswith('.') or not t
        self.W = set(); self.R = set(); self.kind = 'other'; self.op = ''
        self.A = set(); self.B = set(); self.C = set(); self.passes = 0; self.sdata = set(); self.states = 1
        if self.label:
            self.states = 0; return
        p = t.split(None, 1)
        op = p[0]; self.op = op
        ops = split_ops(p[1]) if len(p) > 1 else []
        base = re.sub(r'_(e32|e64|dpp|sdwa)$', '', op)
        if op == 's_nop':
            self.states = int(ops[0], 0) + 1; self.kind = 'salu'; return
        if op.startswith('v_mfma'):
            self.kind = 'mfma'; self.W = regs(ops[0]); self.A = regs(ops[1]); self.B = regs(ops[2]); self.C = regs(ops[3].split()[0])
            self.R = self.A | self.B | self.C
            self.passes = 8 if '32x32x16' in op else 4 if '16x16x32' in op else None
            assert self.passes, op
        elif op.startswith('v_'):
            self.kind = 'valu'
            self.trans = base in TRANS
            self.dpp = 'dpp' in op or ' row_' in t or 'quad_perm' in t
            if 'permlane' in op and 'swap' in op:
                self.W = regs(ops[0]) | regs(ops[1]); self.R = set(self.W); self.perm = True
            elif base.startswith('v_cmp'):
                self.W = regs(ops[0]); self.R = set().union(*[regs(o) for o in ops[1:]])
                if base.startswith('v_cmpx'): self.W.add(('s', 'exec'))
            elif base in ('v_add_co_u32', 'v_sub_co_u32', 'v_addc_co_u32', 'v_subb_co_u32', 'v_subrev_co_u32'):
                self.W = regs(ops[0]) | regs(ops[1]); self.R = set().union(*[regs(o) for o in ops[2:]])
            else:
                self.W = regs(ops[0]); self.R = set().union(*[regs(o) for o in ops[1:]]) if len(ops) > 1 else set()
                if base in ('v_fmac_f32', 'v_dot2c_f32_bf16', 'v_writelane_b32', 'v_pk_fmac_f16') or self.dpp: self.R |= self.W
                if base == 'v_cndmask_b32' and len(ops) == 3: self.R.add(('s', 'vcc'))
        elif op.startswith('ds_'):
            self.kind = 'ds'
            if op.startswith(('ds_read', 'ds_swizzle', 'ds_bpermute', 'ds_permute')) or '_rtn' in op:
                self.W = regs(ops[0]); self.R = set().union(*[regs(o.split()[0]) for o in ops[1:]])
            else:
                self.R = set().union(*[regs(o.split()[0]) for o in ops])
        elif op.startswith(('buffer_', 'global_')):
            self.kind = 'vmem'
            islds = bool(re.search(r'\blds\b', t)) or 'load_lds' in op
            self.lds = islds
            allr = [regs(o.split()[0]) for o in ops if o]
            if op.startswith(('buffer_wbl2', 'buffer_inv')):
                pass
            elif 'load' in op and not islds:
                self.W = allr[0]; self.R = set().union(*allr[1:])
            elif 'atomic' in op and re.search(r'\bsc0\b', t):
                self.W = allr[0]; self.R = set().union(*allr)
            else:
                self.R = set().union(*allr)
                if 'store' in op and ('x3' in op or 'x4' in op):
                    self.sdata = allr[0] if op.startswith('buffer_') else allr[1]
            if islds: self.R.add(('s', 'm0'))
        elif op.startswith('s_'):
            self.kind = 'salu'
            if op.startswith(('s_load', 's_buffer_load', 's_memtime', 's_memrealtime')):
                self.kind = 'smem'; self.W = regs(ops[0]); self.R = set().union(*[regs(o) for o in ops[1:]]) if len(ops) > 1 else set()
            elif op.startswith(('s_cmp', 's_cbranch', 's_branch', 's_waitcnt', 's_barrier', 's_endpgm', 's_sleep', 's_setprio', 's_bitcmp')):
                self.R = set().union(*[regs(o) for o in ops]) if ops else set()
            else:
                self.W = regs(ops[0]) if ops else set(); self.R = set().union(*[regs(o) for o in ops[1:]]) if len(ops) > 1 else set()
                if 'saveexec' in op: self.W.add(('s', 'exec'))

def isv(s): return {r for r in s if r[0] in 'va'}
def iss(s): return {r for r in s if r[0] == 's'}

def need(p, c):
    n = 0
    if p.kind == 'mfma':
        big = {8: 12, 4: 8}[p.passes]; ov = {8: 10, 4: 6}[p.passes]; war = {8: 7, 4: 3}[p.passes]
        if c.kind == 'mfma':
            if p.W & (c.A | c.B): n = max(n, big)
            if p.W & c.C and not (p.W == c.C and p.passes == c.passes): n = max(n, ov)
            if p.W & c.W and not (p.W & c.C): n = max(n, big)
        elif c.kind in ('valu', 'ds', 'vmem'):
            if p.W & (c.R | c.W): n = max(n, big)
            if c.kind == 'valu' and p.C & c.W: n = max(n, war)
    elif p.kind == 'valu':
        if c.kind == 'mfma':
            if isv(p.W) & c.R: n = max(n, 2)
            if ('s', 'exec') in p.W: n = max(n, 4)
        if c.kind == 'valu':
            if p.trans and not c.trans and (p.W & c.R): n = max(n, 1)
            if getattr(c, 'perm', False) and isv(p.W) & c.R: n = max(n, 2)
            if c.dpp and isv(p.W) & c.R: n = max(n, 2)
            if c.op.startswith(('v_readlane', 'v_readfirstlane')) and isv(p.W) & c.R: n = max(n, 1)
            if iss(p.W) & c.R:
                n = max(n, 4 if c.op.startswith(('v_readlane', 'v_writelane')) else 2)
            if ('s', 'exec') in p.W and (c.dpp or getattr(c, 'perm', False) or c.op.startswith(('v_readlane', 'v_readfirstlane', 'v_writelane'))): n = max(n, 5)
        if c.kind == 'vmem' and iss(p.W) & c.R: n = max(n, 5)
        if c.kind in ('salu', 'smem') and iss(p.W) & c.R: n = max(n, 1)
    elif p.kind == 'vmem':
        if p.sdata and c.kind == 'valu' and p.sdata & c.W: n = max(n, 2)
        elif p.sdata and p.sdata & c.W: n = max(n, 1)
    elif p.kind == 'salu':
        if ('s', 'm0') in p.W and c.kind == 'vmem' and getattr(c, 'lds', False): n = max(n, 1)
        if ('s', 'm0') in p.W and c.kind == 'valu' and ('s', 'm0') in c.R: n = max(n, 1)
    return n

def fix(lines, report=None):
    added = 0
    lines = list(lines)
    for it in range(6):
        ins = [I(l) for l in lines]
        labpos = {}
        for i, c in enumerate(ins):
            t = c.text.split(';')[0].strip()
            if t.endswith(':'): labpos[t[:-1]] = i
        srcs = {}
        for i, c in enumerate(ins):
            if c.op.startswith(('s_cbranch', 's_branch')):
                tgt = c.text.split(';')[0].split()[-1]
                if tgt in labpos: srcs.setdefault(labpos[tgt], []).append(i)
        def preds(i):
            p = list(srcs.get(i, []))
            if i > 0 and ins[i - 1].op not in ('s_branch', 's_endpgm'): p.append(i - 1)
            return p
        out = []; changed = False
        extra = [0] * len(ins)
        for i, c in enumerate(ins):
            if not c.label and c.kind != 'other' and (c.R or c.W):
                req = 0; why = None
                best = {}
                stack = [(p, 0) for p in preds(i)]
                while stack:
                    j, dist = stack.pop()
                    if dist >= 14 or best.get(j, 99) <= dist: continue
                    best[j] = dist
                    p = ins[j]
                    if not p.label:
                        r = need(p, c) - dist
                        if r > req: req = r; why = p.text
                    nd = dist + p.states + extra[j]
                    for q in preds(j): stack.append((q, nd))
                if req > 0:
                    out.append(f"    s_nop {req-1}"); extra[i] = req; added += req; changed = True
                    if report is not None: report.append((req, why.strip(), c.text.strip()))
            out.append(lines[i])
        lines = out
        if not changed: break
    return lines, added
```

```python
from common import *
def k0(stamp=None, opt={}):
    k = K("k0_kernel", 256, 256, 0, vgpr=64, sgpr=64 if stamp is None else 102)
    k("s_cmp_ge_u32 s2, 256"); k("s_cbranch_scc1 k0_end")
    if stamp is not None: stamp_begin(k)
    k("s_load_dwordx4 s[4:7], s[0:1], 0")
    k("s_load_dwordx2 s[8:9], s[0:1], 32")
    k("s_load_dwordx2 s[10:11], s[0:1], 80")
    k("v_lshrrev_b32 v1, 5, v0")
    k("s_lshl_b32 s3, s2, 3")
    k("v_add_u32 v1, s3, v1")
    k("v_and_b32 v2, 31, v0")
    k("v_mul_u32_u24 v3, 1152, v1")
    k("v_lshl_add_u32 v3, v2, 4, v3")
    k("v_cmp_gt_u32 vcc, 8, v2")
    k("v_add_u32 v4, 1024, v3")
    k("v_mov_b32 v5, 0x7fffffff")
    k("v_cndmask_b32 v4, v5, v4, vcc")
    k("s_lshl_b32 s3, s2, 8")
    k("v_add_u32 v6, s3, v0")
    k("s_waitcnt lgkmcnt(0)")
    k.srd(12, 4, XN_SZ)
    k("buffer_load_dwordx4 v[8:11], v3, s[12:15], 0 offen")
    k("buffer_load_dwordx4 v[12:15], v3, s[12:15], 0 offen offset:512")
    k("buffer_load_dwordx4 v[16:19], v4, s[12:15], 0 offen")
    k.srd(16, 8, 576 * 4608 * 2)
    k.srd(20, 6, 576 * 1728 * 2)
    k("v_lshlrev_b32 v7, 7, v6")
    k("buffer_load_dword v60, v7, s[16:19], 0 offen")
    k(f"v_subrev_u32 v7, {576*4608*2}, v7")
    k("buffer_load_dword v61, v7, s[20:23], 0 offen")
    if opt.get('cpf'):
        k("s_getpc_b64 s[36:37]")
        k("k0_pc:")
        k("s_add_u32 s36, s36, k1_kernel-k0_pc")
        k("s_addc_u32 s37, s37, 0")
        k("s_mov_b32 s38, code_end-k1_kernel")
        k("s_mov_b32 s39, 0x20000")
        k("s_lshr_b32 s3, s2, 3"); k("s_lshl_b32 s3, s3, 15")
        k("v_lshlrev_b32 v7, 7, v0"); k("v_add_u32 v7, s3, v7")
        k("buffer_load_dword v62, v7, s[36:39], 0 offen")
    k.srd(24, 10, STATS_SZ, off=STATS)
    k.srd(28, 10, VT_SZ, off=VT)
    k.srd(32, 10, XN_SZ, off=XN)
    for r in range(52, 56): k(f"v_mov_b32 v{r}, 0")
    for r in range(56, 60): k(f"v_mov_b32 v{r}, 0x3f803f80")
    k("v_lshlrev_b32 v7, 4, v6")
    k("buffer_store_dwordx4 v[52:55], v7, s[24:27], 0 offen")
    k(f"v_mul_u32_u24 v7, {VSLAB}, v6")
    k("v_add_u32 v7, 9216, v7")
    k("buffer_store_dwordx4 v[56:59], v7, s[28:31], 0 offen")
    k("v_lshrrev_b32 v44, 5, v1"); k("v_mul_u32_u24 v44, 36, v44")
    k("v_lshrrev_b32 v45, 1, v2"); k("v_add_u32 v44, v44, v45"); k("v_lshlrev_b32 v44, 10, v44")
    k("v_and_b32 v45, 1, v2"); k("v_lshlrev_b32 v45, 9, v45"); k("v_add_u32 v44, v44, v45")
    k("v_and_b32 v45, 31, v1"); k("v_lshl_add_u32 v44, v45, 4, v44")
    k("v_add_u32 v45, 16384, v44")
    k("v_add_u32 v46, 32768, v44")
    k("v_cndmask_b32 v46, v5, v46, vcc")
    k(f"s_waitcnt vmcnt({5 if opt.get('cpf') else 4})")
    for i in range(12):
        k(f"v_lshlrev_b32 v{20+2*i}, 16, v{8+i}")
        k(f"v_and_b32 v{21+2*i}, 0xffff0000, v{8+i}")
    def red(acc, t):
        for n in (8, 4, 2, 1):
            k(f"v_add_f32_dpp v{acc}, v{acc}, v{acc} row_ror:{n} row_mask:0xf bank_mask:0xf")
        k(f"v_mov_b32 v{t}, v{acc}")
        k(f"v_permlane16_swap_b32 v{acc}, v{t}")
        k(f"v_add_f32 v{acc}, v{acc}, v{t}")
    for j in range(4): k(f"v_add_f32 v{48+j}, v{20+j}, v{24+j}")
    for i in range(8, 24): k(f"v_add_f32 v{48+i%4}, v{48+i%4}, v{20+i}")
    k("v_add_f32 v48, v48, v49"); k("v_add_f32 v50, v50, v51"); k("v_add_f32 v48, v48, v50")
    red(48, 49)
    k(f"v_mul_f32 v48, {fbits(1.0/576)}, v48")
    k("v_cndmask_b32 v49, 0, v48, vcc")
    for i in range(24): k(f"v_sub_f32 v{20+i}, v{20+i}, v{48 if i < 16 else 49}")
    for j in range(4): k(f"v_mul_f32 v{48+j}, v{20+j}, v{20+j}")
    for i in range(4, 24): k(f"v_fmac_f32 v{48+i%4}, v{20+i}, v{20+i}")
    k("v_add_f32 v48, v48, v49"); k("v_add_f32 v50, v50, v51"); k("v_add_f32 v48, v48, v50")
    red(48, 49)
    k(f"v_mov_b32 v49, {fbits(1e-5)}")
    k(f"v_fmac_f32 v49, {fbits(1.0/576)}, v48")
    k("v_rsq_f32 v49, v49")
    k(f"v_mul_f32 v49, {fbits(KAPPA)}, v49")
    for i in range(24): k(f"v_mul_f32 v{20+i}, v{20+i}, v49")
    for i in range(12): k(f"v_cvt_pk_bf16_f32 v{8+i}, v{20+2*i}, v{21+2*i}")
    k("buffer_store_dwordx4 v[8:11], v44, s[32:35], 0 offen")
    k("buffer_store_dwordx4 v[12:15], v45, s[32:35], 0 offen")
    k("buffer_store_dwordx4 v[16:19], v46, s[32:35], 0 offen")
    if stamp is not None:
        k("s_waitcnt vmcnt(0)")
        stamp_end(k, vt=20, kidx=stamp)
    k("k0_end:"); k("s_endpgm")
    finish(k)
    return k
```

```python
from common import *

NS = 6
CH = 12288
K1_LDS = 9 * CH
PIN, PQ = 9216, 3456
C0G = 2 * 0.7978845608028654 * LOG2E
KAPPA = (C0G * 0.044715) ** (1.0 / 3)
BETA = C0G / KAPPA

vA0, vA1, vP, vA0h, vA1h, vPh, vL16, vZ, vO, vL4 = 1, 2, 3, 4, 5, 6, 10, 11, 12, 13
vDin, vDq, vDp = [7, 8, 9], [14, 15, 223], [245, 247, 249]
P, Q, R, XV, WF = 16, 80, 144, 160, 192
NWF = 6
ST = [216, 217, 218, 219, 220, 221]
vT = 222
T0 = 224
OB = [232, 236, 240]
NR = [244, 246, 248, 250]
vF = 252
sXN, sWIN, sWQ, sZ1, sZ2, sOUT, sST, sZ1p, sZ2p = 4, 8, 12, 16, 20, 24, 28, 32, 36
sW, sG, sTB = 40, 41, 42
sX0, sX1, sLW = 43, 44, 45
sBA, sBP, sBC, sBB = 46, 47, 48, 49
sT, sT2 = 50, 51
sBE, sFL = 52, 53
sZA = [54, 55]; sZp = 56; sOo = [57, 58]; sSTo = 59
sSC = 60; sMASK = 62; sCNT = 63
sPOLL = 64
MARKS = [66, 68, 70, 72, 74, 76, 78, 80, 82]
sPF = 84

def xreg(tb, ks):
    f = ks * 2 + tb
    return f"a[{4*f}:{4*f+3}]" if f < 64 else f"v[{XV+4*(f-64)}:{XV+4*(f-64)+3}]"

def gelu_quad(F, a, t, pk=False):
    if pk:
        for j in (0, 2): F.v(f"v_pk_fma_f32 v[{t+j}:{t+j+1}], v[{a+j}:{a+j+1}], v[{a+j}:{a+j+1}], s[{sBE}:{sBE+1}] op_sel_hi:[1,1,0] neg_lo:[1,0,1] neg_hi:[1,0,1]")
        for j in (0, 2): F.v(f"v_pk_mul_f32 v[{t+j}:{t+j+1}], v[{t+j}:{t+j+1}], v[{a+j}:{a+j+1}]")
    else:
        for j in range(4): F.v(f"v_fma_f32 v{t+j}, -v{a+j}, v{a+j}, -s{sBE}")
        for j in range(4): F.v(f"v_mul_f32 v{t+j}, v{t+j}, v{a+j}")
    for j in range(4): F.v(f"v_exp_f32 v{t+j}, v{t+j}")
    if pk:
        for j in (0, 2): F.v(f"v_pk_add_f32 v[{t+j}:{t+j+1}], v[{t+j}:{t+j+1}], 1.0 op_sel_hi:[1,0]")
    else:
        for j in range(4): F.v(f"v_add_f32 v{t+j}, 1.0, v{t+j}")
    for j in range(4): F.v(f"v_rcp_f32 v{t+j}, v{t+j}")
    if pk:
        for j in (0, 2): F.v(f"v_pk_mul_f32 v[{t+j}:{t+j+1}], v[{t+j}:{t+j+1}], v[{a+j}:{a+j+1}]")
    else:
        for j in range(4): F.v(f"v_mul_f32 v{t+j}, v{t+j}, v{a+j}")

PBASE = NS * CH
def body(k, ptb, isv, WTF, name, prof=False, opt={}):
    dummy = K("d", 1, 1, 0)
    tail = body1(dummy, ptb, isv, WTF, name, prof, opt, set())
    body1(k, ptb, isv, WTF, name, prof, opt, tail, True)

def body1(k, ptb, isv, WTF, name, prof, opt, pkset, verbose=False):
    S = Sched(k)
    def mark(i):
        if prof: S(f"{'s_memrealtime' if opt.get('rt') else 's_memtime'} s[{MARKS[i]}:{MARKS[i]+1}]")
    chunks = [('A', i) for i in range(6)] + [('C', i) for i in range(6)] + [('B', i) for i in range(6)]
    def dma(c, i):
        if c[0] == 'P':
            li = c[1]
            if i == 0:
                S(f"s_add_u32 m0, s{sLW}, {PBASE + li * CH}")
                S(f"s_add_u32 s{sT}, s{sBP}, {192 * li * PIN}")
            v, srd = vDp, sWIN
        else:
            kind, li = chunks[c[1]]
            if i == 0:
                S(f"s_add_u32 m0, s{sLW}, {(c[1] % NS) * CH}")
                if kind == 'B': S(f"s_add_u32 s{sT}, s{sBB}, {96 * li * PQ}")
                else: S(f"s_add_u32 s{sT}, s{sBA if kind == 'A' else sBC}, {96 * li * PIN}")
            v, srd = (vDq, sWQ) if kind == 'B' else (vDin, sWIN)
        S.vmem(f"buffer_load_dwordx4 v{v[i]}, s[{srd}:{srd+3}], s{sT} offen offset:{i * 1024} lds", c)
    def xload(ks, tb):
        if ks % 4 == 0 and ks: S(f"s_add_u32 s{sX0 + tb}, s{sX0 + tb}, 4096")
        S.vmem(f"buffer_load_dwordx4 {xreg(tb, ks)}, v{vL16}, s[{sXN}:{sXN+3}], s{sX0 + tb} offen offset:{(ks % 4) * 1024}", ('X', ks, tb))
    CACC = [Q, Q + 32]; BACC = [P + 32, Q]
    fr = []
    def addf(phase, c, j, ks, nb, accs):
        fr.append(dict(ph=phase, c=c, j=j, ks=ks, nb=nb, accs=accs))
    for li in range(6):
        for j in range(6):
            for nb in range(2): addf('A', li, j, li * 6 + j, nb, [(tb, P + 16 * (2 * nb + tb)) for tb in range(2)])
            addf('A', li, j, li * 6 + j, 2, [(ptb, R)])
    for ph, c0, ac in (('C', 6, CACC), ('B', 12, BACC)):
        for nb in range(2):
            for li in range(6):
                for j in range(6): addf('%s%d' % (ph, nb), c0 + li, j, li * 6 + j, nb, [(tb, ac[nb] + 16 * tb) for tb in range(2)])
    for i, f in enumerate(fr):
        f['i'] = i; f['buf'] = WF + 4 * (i % NWF)
        f['first'] = (i == 0 or fr[i - 1]['c'] != f['c']) and f['ph'] != 'B1'
    LA = NWF - 2
    def reads(f):
        slot = f['c'] % NS
        base = slot * CH; hi = slot == 5
        if hi: base = 0
        o = []
        for jj in range(2):
            r = f['buf'] + 2 * jj
            if f['nb'] == 2: a = vP; off = f['ks'] * 1024 + jj * 256
            else: a = (vA0h if hi else vA0) + f['nb']; off = base + f['j'] * 2048 + jj * 512
            o.append((f"ds_read_b64_tr_b16 v[{r}:{r+1}], v{a} offset:{off}", ('W', f['i'])))
        return o
    def mfmas(f):
        o = []
        for tb, acc in f['accs']:
            w = f"v[{f['buf']}:{f['buf']+3}]"; x = xreg(tb, f['ks'])
            a, b = (x, w) if (f['ph'][0] == 'B' and isv) else (w, x)
            cin = "0" if f['ks'] == 0 else f"v[{acc}:{acc+15}]"
            o.append(f"v_mfma_f32_32x32x16_bf16 v[{acc}:{acc+15}], {a}, {b}, {cin}")
        return o
    passed = set()
    def barrier(f):
        c = f['c']
        if f['ph'] != 'C1':
            tags = [('D', c)]
            if c in (0, 2, 4): tags.append(('P', c // 2))
            S.wait(vm=tags)
        S("s_barrier")
        passed.add((f['ph'], c))
    ctr = [0]; tq = [0]; gid = [0]
    F = Fill()
    def grp():
        gid[0] += 1; F.q.append(('grp', gid[0])); return gid[0] in pkset
    pfn = [0]
    def wpf():
        q = pfn[0]; pfn[0] += 1
        per = opt.get('wpf', 2)
        if not per or q % per: return
        p = q // per
        if p < 4:
            F.v(f"v_add_u32 v{vT}, {p * (2 << 20)}, v255")
            F.vm(f"global_load_dword v254, v{vT}, s[{sPF}:{sPF+1}]")
        elif p == 4:
            F.vm(f"global_load_dword v254, v255, s[{sPF+2}:{sPF+3}]")
        elif p == 5:
            F.v(f"v_lshrrev_b32 v255, 1, v255")
            F.v(f"v_add_u32 v{vT}, {2 << 20}, v255")
            F.v(f"v_min_u32 v{vT}, {2304*576*2-4}, v{vT}")
            F.vm(f"global_load_dword v254, v{vT}, s[{sPF+2}:{sPF+3}]")
        elif p == 6:
            F.v(f"v_min_u32 v{vT}, {576*576*2-4}, v255")
            F.vm(f"global_load_dword v254, v{vT}, s[{sPF+4}:{sPF+5}]")
    def z2_block(c, st, dst, also_store=False):
        for g in range(4):
            wpf()
            t = T0 + 4 * (tq[0] % 2); tq[0] += 1
            gelu_quad(F, c + 4 * g, t, grp())
            for j in range(4):
                F.v(f"v_add_f32 v{st[0]}, v{st[0]}, v{t+j}")
                F.v(f"v_fmac_f32 v{st[1]}, v{t+j}, v{t+j}")
            F.v(f"v_cvt_pk_bf16_f32 v{dst+2*g}, v{t}, v{t+1}")
            F.v(f"v_cvt_pk_bf16_f32 v{dst+2*g+1}, v{t+2}, v{t+3}")
            if also_store and g % 2:
                F.vm(f"buffer_store_dwordx4 v[{dst+2*g-2}:{dst+2*g+1}], v{vZ}, s[{sZ1p}:{sZ1p+3}], s{sZp} offen offset:{(g // 2) * 256} {WTF}")
    def z1_half(nb, tb, i):
        c = CACC[nb] + 16 * tb
        ob = OB[ctr[0] % 3]; ctr[0] += 1
        for g in (2 * i, 2 * i + 1):
            t = T0 + 4 * (tq[0] % 2); tq[0] += 1
            gelu_quad(F, c + 4 * g, t, grp())
            pos = (g % 2) ^ (g // 2)
            F.v(f"v_cvt_pk_bf16_f32 v{ob+2*pos}, v{t}, v{t+1}")
            F.v(f"v_cvt_pk_bf16_f32 v{ob+2*pos+1}, v{t+2}, v{t+3}")
        F.vm(f"buffer_store_dwordx4 v[{ob}:{ob+3}], v{vZ}, s[{sZ1}:{sZ1+3}], s{sZA[tb]} offen offset:{nb * 1024 + i * 256} {WTF}")
    def after(ph): F.q.append(('after', ph))
    def before(ph): F.q.append(('before', ph))
    def bud(b): F.q.append(('bud', b))
    after('A')
    bud(opt.get('b1', 44))
    for nb in range(2):
        for tb in range(2): z2_block(P + 16 * (2 * nb + tb), (ST[2 * tb], ST[2 * tb + 1]), P + 8 * (2 * nb + tb))
    before('B0')
    z2_block(R, (ST[4], ST[5]), R, True)
    F.v(f"v_fma_f32 v{ST[2*ptb]}, v{ST[4]}, s{sFL}, v{ST[2*ptb]}")
    F.v(f"v_fma_f32 v{ST[2*ptb+1]}, v{ST[5]}, s{sFL}, v{ST[2*ptb+1]}")
    F.v(f"v_mov_b32 v{vF}, 0")
    for tb in (1 - ptb, ptb): F.v(f"v_permlane32_swap_b32 v{ST[2*tb]}, v{ST[2*tb+1]}")
    for tb in range(2): F.v(f"v_add_f32 v{ST[2*tb]}, v{ST[2*tb]}, v{ST[2*tb+1]}")
    for tb in range(2):
        F.vm(f"buffer_atomic_add_f32 v{ST[2*tb]}, v{vL4}, s[{sST}:{sST+3}], s{sSTo} offen offset:{tb * 256}", 'AT')
    F.fn(lambda S: mark(5), 0)
    bud(opt.get('b2', 24))
    def eb(nb, tb):
        c = BACC[nb] + 16 * tb
        if not isv:
            for g in range(4):
                ob = OB[ctr[0] % 3]; ctr[0] += 1
                if grp():
                    for j in (0, 2): F.v(f"v_pk_mul_f32 v[{c+4*g+j}:{c+4*g+j+1}], v[{c+4*g+j}:{c+4*g+j+1}], s[{sSC}:{sSC+1}] op_sel_hi:[1,0]")
                else:
                    for j in range(4): F.v(f"v_mul_f32 v{c+4*g+j}, s{sSC}, v{c+4*g+j}")
                F.v(f"v_cvt_pk_bf16_f32 v{ob}, v{c+4*g}, v{c+4*g+1}")
                F.v(f"v_cvt_pk_bf16_f32 v{ob+1}, v{c+4*g+2}, v{c+4*g+3}")
                F.vm(f"buffer_store_dwordx2 v[{ob}:{ob+1}], v{vO}, s[{sOUT}:{sOUT+3}], s{sOo[tb]} offen offset:{(8 * nb + g) * 256} {WTF}")
        else:
            for u in range(2):
                ob = OB[ctr[0] % 3]; ctr[0] += 1
                for d in range(4): F.v(f"v_cvt_pk_bf16_f32 v{ob+d}, v{c+8*u+2*d}, v{c+8*u+2*d+1}")
                F.v(f"s_add_u32 s{sT2}, s{sOo[tb]}, {2 * u * VSLAB}")
                F.vm(f"buffer_store_dwordx4 v[{ob}:{ob+3}], v{vO}, s[{sOUT}:{sOUT+3}], s{sT2} offen offset:{nb * 512} {WTF}")
    def pub(S):
        S.wait(vm='AT')
        S(f"v_mov_b32 v{vT}, 1")
        S("s_mov_b64 exec, 1")
        S.vmem(f"buffer_atomic_add v{vT}, v{vF}, s[{sST}:{sST+3}], s{sCNT} offen")
        S("s_mov_b64 exec, -1")
    def poll(S):
        l1 = k.label("pl"); l2 = k.label("pd")
        mark(2)
        S.wait(vm='FLAG')
        S(f"s_mov_b32 s{sT2}, 0")
        S(f"{l1}:")
        S(f"v_readfirstlane_b32 s{sPOLL}, v{vF+1}")
        S(f"s_cmp_ge_u32 s{sPOLL}, 32"); S(f"s_cbranch_scc1 {l2}")
        S(f"s_add_u32 s{sT2}, s{sT2}, 1"); S(f"s_cmp_ge_u32 s{sT2}, 100000"); S(f"s_cbranch_scc1 {l2}")
        S("s_sleep 4")
        S(f"buffer_load_dword v{vF+1}, v{vF}, s[{sST}:{sST+3}], s{sCNT} offen sc1")
        S("s_waitcnt vmcnt(0)")
        S(f"s_branch {l1}")
        S(f"{l2}:")
        mark(6)
    def nsetup():
        for tb in range(2):
            F.w(vm=('SL', tb))
            F.v(f"v_mov_b32 v{ST[2*tb+1]}, v{ST[2*tb]}")
        EPS = 1e-5 * KAPPA * KAPPA
        for tb in range(2): F.v(f"v_mov_b32 v{NR[2*tb]}, {fbits(EPS)}")
        for tb in range(2): F.v(f"v_permlane32_swap_b32 v{ST[2*tb]}, v{ST[2*tb+1]}")
        for tb in range(2): F.v(f"v_mul_f32 v{ST[2*tb]}, {fbits(1.0/2304)}, v{ST[2*tb]}")
        for tb in range(2): F.v(f"v_fmac_f32 v{NR[2*tb]}, {fbits(1.0/2304)}, v{ST[2*tb+1]}")
        for tb in range(2): F.v(f"v_fma_f32 v{NR[2*tb]}, -v{ST[2*tb]}, v{ST[2*tb]}, v{NR[2*tb]}")
        for tb in range(2): F.v(f"v_max_f32 v{NR[2*tb]}, {fbits(EPS)}, v{NR[2*tb]}")
        for tb in range(2): F.v(f"v_rsq_f32 v{NR[2*tb]}, v{NR[2*tb]}")
        for tb in range(2): F.v(f"v_mul_f32 v{NR[2*tb]}, {fbits(1.0/KAPPA)}, v{NR[2*tb]}")
        for tb in range(2): F.v(f"v_mul_f32 v{NR[2*tb+1]}, -v{ST[2*tb]}, v{NR[2*tb]}")
    def nunit(u):
        if u < 8: blk, i = u // 2, u % 2; nb, tb = blk // 2, blk % 2; src = P + 4 * u
        else: i = u - 8; tb = ptb; src = R + 4 * i
        r = R + 8
        pk = grp()
        for d in range(4):
            F.v(f"v_lshlrev_b32 v{r+2*d}, 16, v{src+d}")
            F.v(f"v_and_b32 v{r+2*d+1}, s{sMASK}, v{src+d}")
        if pk:
            for d in range(4):
                F.v(f"v_pk_fma_f32 v[{r+2*d}:{r+2*d+1}], v[{r+2*d}:{r+2*d+1}], v[{NR[2*tb]}:{NR[2*tb]+1}], v[{NR[2*tb+1]}:{NR[2*tb+1]+1}] op_sel_hi:[1,0,0]")
        else:
            for d in range(8): F.v(f"v_fma_f32 v{r+d}, v{r+d}, v{NR[2*tb]}, v{NR[2*tb+1]}")
        for d in range(4): F.v(f"v_cvt_pk_bf16_f32 v{src+d}, v{r+2*d}, v{r+2*d+1}")
        if u < 8: F.vm(f"buffer_store_dwordx4 v[{src}:{src+3}], v{vZ}, s[{sZ2}:{sZ2+3}], s{sZA[tb]} offen offset:{nb * 1024 + i * 256} {WTF}")
        else: F.vm(f"buffer_store_dwordx4 v[{src}:{src+3}], v{vZ}, s[{sZ2p}:{sZ2p+3}], s{sZp} offen offset:{i * 256} {WTF}")
    halves = [(nb, tb, i) for nb in range(2) for tb in range(2) for i in range(2)]
    PUB, FLG = opt.get('pub', 2), opt.get('flg', 4)
    after('C0')
    nu = 0
    for h, (nb, tb, i) in enumerate(halves):
        if h == 4: before('B1'); after('C1')
        z1_half(nb, tb, i)
        if h + 1 == PUB: F.fn(pub, 20)
        if h + 1 == FLG: F.vm(f"buffer_load_dword v{vF+1}, v{vF}, s[{sST}:{sST+3}], s{sCNT} offen sc1", 'FLAG')
        if h == FLG:
            F.fn(poll, 24)
            for t2 in range(2):
                F.vm(f"buffer_load_dword v{ST[2*t2]}, v{vL4}, s[{sST}:{sST+3}], s{sSTo} offen offset:{t2 * 256} sc1", ('SL', t2))
        if h == FLG + 1: nsetup()
        if h >= FLG + 1:
            left = 8 - h
            n = -(-(10 - nu) // left)
            for _ in range(n): nunit(nu); nu += 1
    assert nu == 10
    after('B0')
    eb(0, 0); eb(0, 1)
    after('B1')
    eb(1, 0); eb(1, 1)

    done_ph = set(); BUDV = [24]; carry = [0]
    def femit(budget):
        used = 0
        while not F.empty():
            it = F.q[F.pos]
            if it[0] == 'after':
                if it[1] in done_ph: F.pos += 1; continue
                break
            if it[0] == 'bud': BUDV[0] = it[1]; F.pos += 1; continue
            if it[0] in ('before', 'grp'): F.pos += 1; continue
            if it[0] == 'gap':
                take = min(it[1], budget - used)
                if take <= 0: break
                used += take
                if take == it[1]: F.pos += 1
                else: F.q[F.pos] = ('gap', it[1] - take)
                continue
            c = F.icost(it)
            if used + c > budget and not (used == 0 and c > 20): break
            used += F.emit1(S)
        return used
    def force_before(ph):
        idx = [i for i in range(F.pos, len(F.q)) if F.q[i] == ('before', ph)]
        n = 0
        if idx:
            while F.pos <= idx[-1]:
                it = F.q[F.pos]
                if it[0] == 'bud': BUDV[0] = it[1]; F.pos += 1
                elif it[0] in ('before', 'gap', 'grp'): F.pos += 1
                elif it[0] == 'after': assert it[1] in done_ph; F.pos += 1
                else: n += F.emit1(S)
        if verbose and n: print(f"   forced {n} before {ph}")
    BUD = opt.get('bud', 24)
    XA = opt.get('xa', 6)
    S.vm += [('D', 0)] * 3 + [('P', 0)] * 3 + [('X', ks, tb) for ks in range(3) for tb in range(2)]
    lq = []
    DL = opt.get('dl', 4)
    for ks in range(3, 36):
        for c in range(1, 6):
            if ks == max(3, 6 * c - DL):
                lq += [('dma', ('D', c), i) for i in range(3)]
                if c % 2 == 0: lq += [('dma', ('P', c // 2), i) for i in range(3)]
        lq += [('x', ks, 0), ('x', ks, 1)]
    lq += [('dma', ('D', c), i) for c in range(6, 18) for i in range(3)]
    def can(it):
        if it[0] == 'dma' and it[1][0] == 'D' and it[1][1] >= NS:
            c = it[1][1] - NS + 2
            if it[1][1] < 12: return (('A', c) if c < 6 else ('C0', c)) in passed
            return (('C1', c) if c < 12 else ('B0', c)) in passed
        return True
    def issue():
        it = lq.pop(0)
        if it[0] == 'x': xload(it[1], it[2])
        else: dma(it[1], it[2])
    mark(0)
    while lq[0] != ('x', XA, 0): issue()
    barrier(fr[0])
    for f in fr[:LA]:
        for t, tag in reads(f): S.lds(t, tag)
    delay = 0
    seq = [(f, mi, m) for f in fr for mi, m in enumerate(mfmas(f))]
    def wtag(f):
        i = f['i']
        if f['ph'] == 'A': return ('W', i + 1) if f['nb'] == 0 else ('W', i)
        return ('W', i + 1) if i % 2 == 0 and i + 1 < len(fr) else ('W', i)
    def waits(n):
        f, mi, m = seq[n]
        if mi: return
        vm = ('X', f['ks'], 1) if f['ph'] == 'A' and f['nb'] == 0 else None
        S.wait(vm=vm, lg=wtag(f))
    waits(0)
    nxa = sum(1 for it in lq if it[0] == 'x' or it[1][0] == 'P' or it[1][1] < 6)
    rate = nxa / (5.0 * (36 - XA)); acc = 0.0
    for n, (f, mi, m) in enumerate(seq):
        i = f['i']
        if mi == 0 and (i == 0 or fr[i - 1]['ph'] != f['ph']):
            if i: pending_done = fr[i - 1]['ph']; delay = 3
            force_before(f['ph'])
            if f['ph'] in ('A', 'C0', 'B0'): mark({'A': 1, 'C0': 3, 'B0': 4}[f['ph']])
        nxt = fr[i + LA] if i + LA < len(fr) else None
        rd = reads(nxt) if nxt else []
        nm = len(f['accs'])
        S(m)
        n0 = len(k.lines)
        if mi == 0 and nxt and nxt['first']: barrier(nxt)
        per = -(-len(rd) // nm)
        for t, tag in rd[mi * per:(mi + 1) * per]: S.lds(t, tag)
        if f['ph'] == 'A':
            acc += rate
            if acc >= 1 and lq and can(lq[0]): issue(); acc -= 1
        elif lq and can(lq[0]) and mi == nm - 1: issue()
        if delay:
            delay -= 1
            if not delay: done_ph.add(pending_done)
        nw = 0
        if n + 1 < len(seq):
            f2, mi2, _ = seq[n + 1]
            if mi2 == 0 and f2['i'] % 2 == 0: nw = 4
        b = BUDV[0] + carry[0] - 4 * (len(k.lines) - n0) - nw
        u = femit(b)
        carry[0] = max(0, min(6, b - u)) if BUDV[0] > 24 else 0
        if n + 1 < len(seq): waits(n + 1)
    assert not lq
    done_ph.add('B1')
    mark(7)
    tail = {it[1] for it in F.q[F.pos:] if it[0] == 'grp'}
    rem = sum(F.icost(it) for it in F.q[F.pos:] if it[0] not in ('after', 'before', 'grp', 'bud'))
    femit(10**9)
    assert F.empty()
    mark(8)
    if verbose: print(f"  {name}: tail cost {rem}, tail groups {sorted(tail)}")
    return tail

def make_k1(stamp=None, wt=True, opt={}):
    WTF = "sc1" if wt else ""
    prof = stamp is not None
    k = K("k1_kernel", 256, 256, K1_LDS, vgpr=256, agpr=256)
    k("s_load_dwordx4 s[72:75], s[0:1], 72")
    k("s_load_dwordx2 s[68:69], s[0:1], 32")
    k("s_load_dwordx2 s[66:67], s[0:1], 8")
    k(f"s_load_dwordx2 s[{sPF}:{sPF+1}], s[0:1], 40")
    k(f"s_load_dwordx2 s[{sPF+2}:{sPF+3}], s[0:1], 56")
    k(f"s_load_dwordx2 s[{sPF+4}:{sPF+5}], s[0:1], 16")
    k("s_cmp_ge_u32 s2, 256"); k("s_cbranch_scc1 k1_end")
    if prof: stamp_begin(k)
    k("v_lshrrev_b32 v16, 6, v0")
    k("v_and_b32 v17, 63, v0")
    k(f"v_readfirstlane_b32 s{sW}, v16")
    k("s_and_b32 s76, s2, 7"); k("s_lshr_b32 s77, s2, 3")
    if opt.get('map', 24) == 24:
        k("s_and_b32 s78, s76, 1"); k("s_lshl_b32 s78, s78, 2"); k("s_and_b32 s79, s77, 3"); k("s_add_u32 s78, s78, s79")
        k("s_lshr_b32 s79, s76, 1"); k("s_lshl_b32 s79, s79, 3"); k("s_lshr_b32 s80, s77, 2"); k(f"s_add_u32 s{sG}, s79, s80")
    else:
        k("s_and_b32 s78, s76, 3"); k("s_lshl_b32 s78, s78, 1"); k("s_and_b32 s79, s77, 1"); k("s_add_u32 s78, s78, s79")
        k("s_lshr_b32 s79, s76, 2"); k("s_lshl_b32 s79, s79, 4"); k("s_lshr_b32 s80, s77, 1"); k(f"s_add_u32 s{sG}, s79, s80")
    k(f"s_lshl_b32 s{sTB}, s78, 3"); k(f"s_lshl_b32 s79, s{sW}, 1"); k(f"s_add_u32 s{sTB}, s{sTB}, s79")
    k(f"s_mul_i32 s{sX0}, s{sTB}, 36864"); k(f"s_add_u32 s{sX1}, s{sX0}, 36864")
    k(f"s_mul_i32 s{sLW}, s{sW}, 3072")
    k(f"v_lshlrev_b32 v{vL16}, 4, v17")
    k("v_lshrrev_b32 v18, 3, v17"); k(f"s_mul_i32 s79, s{sW}, 24"); k("v_add_u32 v18, s79, v18")
    k("v_bfe_u32 v19, v17, 4, 1"); k("v_lshlrev_b32 v19, 2, v19"); k("v_and_b32 v20, 7, v17"); k("v_xor_b32 v19, v19, v20"); k("v_lshlrev_b32 v19, 4, v19")
    k(f"v_mul_u32_u24 v{vDin[0]}, {PIN}, v18"); k(f"v_add_u32 v{vDin[0]}, v{vDin[0]}, v19")
    for i in (1, 2): k(f"v_add_u32 v{vDin[i]}, {i * (8 * PIN - 1024)}, v{vDin[0]}")
    k(f"s_lshl_b32 s{sBC}, s{sG}, 7"); k(f"s_add_u32 s{sBA}, s{sBC}, 4608"); k(f"s_mov_b32 s{sBB}, s{sBC}")
    k(f"s_mov_b32 s{sXN+2}, {XN_SZ}"); k(f"s_mov_b32 s{sXN+3}, 0x20000")
    k(f"s_mov_b32 s{sWIN+2}, {576*4608*2}"); k(f"s_mov_b32 s{sWIN+3}, 0x20000")
    k("v_lshrrev_b32 v20, 2, v17"); k(f"s_mul_i32 s79, s{sW}, 48"); k("v_add_u32 v20, s79, v20")
    k(f"v_mul_u32_u24 v{vDp[0]}, {PIN}, v20"); k("v_and_b32 v26, 3, v17"); k(f"v_lshl_add_u32 v{vDp[0]}, v26, 4, v{vDp[0]}")
    for i in (1, 2): k(f"v_add_u32 v{vDp[i]}, {i * (16 * PIN - 1024)}, v{vDp[0]}")
    k(f"s_and_b32 s79, s{sG}, 7"); k("s_add_u32 s81, s79, 64")
    k(f"s_bfe_u32 s80, s{sG}, 0x10003")
    k(f"s_lshl_b32 s{sBP}, s81, 6")
    k("s_cmp_eq_u32 s80, 0")
    k("s_cselect_b32 s82, 4608, 0"); k(f"s_cselect_b32 s{sFL}, 1.0, 0")
    k(f"s_cselect_b32 s{sZ1p+2}, 0, {Z_SZ}"); k(f"s_cselect_b32 s{sZ2p+2}, {Z_SZ}, 0")
    k(f"s_add_u32 s{sBP}, s{sBP}, s82")
    k(f"s_add_u32 m0, s{sLW}, 0")
    k("s_waitcnt lgkmcnt(0)")
    assert XN == 0
    k(f"s_mov_b32 s{sXN}, s74"); k(f"s_mov_b32 s{sXN+1}, s75")
    k(f"s_mov_b32 s{sWIN}, s68"); k(f"s_mov_b32 s{sWIN+1}, s69")
    for i in range(3):
        k(f"buffer_load_dwordx4 v{vDin[i]}, s[{sWIN}:{sWIN+3}], s{sBA} offen offset:{i * 1024} lds")
    k(f"s_add_u32 m0, s{sLW}, {PBASE}")
    for i in range(3):
        k(f"buffer_load_dwordx4 v{vDp[i]}, s[{sWIN}:{sWIN+3}], s{sBP} offen offset:{i * 1024} lds")
    for ks in range(3):
        for tb in range(2):
            k(f"buffer_load_dwordx4 {xreg(tb, ks)}, v{vL16}, s[{sXN}:{sXN+3}], s{sX0 + tb} offen offset:{ks * 1024}")
    k("s_lshl_b32 s79, s2, 13"); k("v_lshlrev_b32 v255, 5, v0"); k("v_add_u32 v255, s79, v255")
    k(f"v_lshlrev_b32 v{vL4}, 2, v17")
    k(f"v_mul_u32_u24 v{vDq[0]}, {PQ}, v18"); k(f"v_add_u32 v{vDq[0]}, v{vDq[0]}, v19")
    for i in (1, 2): k(f"v_add_u32 v{vDq[i]}, {i * (8 * PQ - 1024)}, v{vDq[0]}")
    k.srd(sWQ, 66, 576 * 1728 * 2)
    k(f"s_cmp_lt_u32 s{sG}, 27"); k(f"s_cselect_b32 s{sWQ+2}, s{sWQ+2}, 0")
    k("v_bfe_u32 v18, v17, 4, 1"); k("v_and_b32 v19, 3, v17"); k("v_lshl_add_u32 v18, v18, 2, v19")
    k("v_and_b32 v19, 1, v18"); k("v_lshlrev_b32 v19, 2, v19"); k("v_lshrrev_b32 v20, 1, v18"); k("v_add_u32 v19, v19, v20")
    k("v_lshrrev_b32 v20, 5, v17"); k("v_lshlrev_b32 v20, 3, v20"); k("v_bfe_u32 v21, v17, 2, 2"); k("v_add_u32 v20, v20, v21")
    k(f"v_lshlrev_b32 v{vA0}, 7, v20"); k(f"v_lshl_add_u32 v{vA0}, v19, 3, v{vA0}")
    k("v_bfe_u32 v21, v17, 3, 1"); k("v_lshlrev_b32 v21, 6, v21"); k(f"v_xor_b32 v{vA0}, v{vA0}, v21")
    k(f"v_xor_b32 v{vA1}, 64, v{vA0}")
    k("v_lshrrev_b32 v21, 1, v19"); k("v_and_b32 v21, s80, v21"); k("v_xor_b32 v21, v21, v19")
    k(f"v_lshlrev_b32 v{vP}, 6, v20"); k(f"v_lshl_add_u32 v{vP}, v21, 3, v{vP}")
    for a, b in ((vA0h, vA0), (vA1h, vA1)): k(f"v_add_u32 v{a}, {5 * CH}, v{b}")
    k(f"v_add_u32 v{vP}, {PBASE}, v{vP}")
    k("v_bfe_u32 v20, v17, 4, 1"); k(f"v_mul_u32_u24 v{vZ}, 73728, v20")
    k("v_lshrrev_b32 v21, 5, v17"); k(f"v_lshl_add_u32 v{vZ}, v21, 9, v{vZ}")
    k("v_and_b32 v20, 15, v17"); k(f"v_lshl_add_u32 v{vZ}, v20, 4, v{vZ}")
    k(f"s_mul_i32 s83, s{sTB}, 147456")
    k(f"s_lshl_b32 s79, s{sG}, 11"); k(f"s_add_u32 s{sZA[0]}, s83, s79"); k(f"s_add_u32 s{sZA[1]}, s{sZA[0]}, 147456")
    k("s_lshl_b32 s79, s81, 10"); k(f"s_add_u32 s{sZp}, s83, s79")
    k(f"s_cmp_lt_u32 s{sG}, 16"); k("s_cselect_b32 s79, 147456, 0"); k(f"s_add_u32 s{sZp}, s{sZp}, s79")
    k(f"s_lshl_b32 s{sSTo}, s{sTB}, 8")
    k.srd(sZ1, 74, Z_SZ, off=Z1); k.srd(sZ2, 74, Z_SZ, off=Z2N); k.srd(sST, 74, STATS_SZ, off=STATS)
    for d, s in ((sZ1p, sZ1), (sZ2p, sZ2)):
        k(f"s_mov_b32 s{d}, s{s}"); k(f"s_mov_b32 s{d+1}, s{s+1}"); k(f"s_mov_b32 s{d+3}, 0x20000")
    k(f"s_lshl_b32 s{sCNT}, s{sTB}, 6"); k(f"s_add_u32 s{sCNT}, s{sCNT}, 16384")
    k(f"s_mov_b32 s{sBE}, {fbits(BETA)}"); k(f"s_mov_b32 s{sMASK}, 0xffff0000")
    k(f"s_cmp_lt_u32 s{sG}, 9"); k(f"s_cselect_b32 s{sSC}, {fbits(18 ** -0.5 * LOG2E / KAPPA)}, s{sSC}")
    k(f"s_cselect_b32 s{sSC}, s{sSC}, {fbits(1.0 / KAPPA)}")
    for r in ST: k(f"v_mov_b32 v{r}, 0")
    k(f"s_cmp_lt_u32 s{sG}, 18"); k("s_cbranch_scc1 k1_qk")
    k(f"s_cmp_ge_u32 s{sG}, 27"); k("s_cbranch_scc1 k1_qk")
    k.srd(sOUT, 74, VT_SZ, off=VT)
    k("v_and_b32 v18, 31, v17"); k("v_lshrrev_b32 v19, 2, v18")
    k("v_and_b32 v20, 1, v19"); k("v_lshlrev_b32 v20, 2, v20"); k("v_lshrrev_b32 v19, 1, v19"); k("v_add_u32 v19, v19, v20")
    k("v_and_b32 v18, 3, v18"); k("v_lshl_add_u32 v18, v19, 2, v18"); k("v_lshlrev_b32 v18, 4, v18")
    k("v_lshrrev_b32 v19, 5, v17"); k(f"v_mul_u32_u24 v19, {VSLAB}, v19"); k(f"v_add_u32 v{vO}, v18, v19")
    k(f"s_mul_i32 s{sOo[0]}, s{sTB}, {4*VSLAB}"); k(f"s_sub_u32 s79, s{sG}, 18"); k("s_lshl_b32 s79, s79, 10")
    k(f"s_add_u32 s{sOo[0]}, s{sOo[0]}, s79"); k(f"s_add_u32 s{sOo[1]}, s{sOo[0]}, {4*VSLAB}")
    body(k, 0, True, WTF, "v", prof, opt)
    k("s_branch k1_fin")
    k("k1_qk:")
    k.srd(sOUT, 74, QK_SZ, off=QK)
    k(f"s_cmp_lt_u32 s{sG}, 27"); k(f"s_cselect_b32 s{sOUT+2}, s{sOUT+2}, 0")
    k("v_lshrrev_b32 v19, 5, v17"); k("v_lshlrev_b32 v19, 10, v19"); k("v_and_b32 v18, 31, v17"); k(f"v_lshl_add_u32 v{vO}, v18, 3, v19")
    k(f"s_mul_i32 s{sOo[0]}, s{sTB}, {288*256}"); k(f"s_lshl_b32 s79, s{sG}, 12")
    k(f"s_add_u32 s{sOo[0]}, s{sOo[0]}, s79"); k(f"s_add_u32 s{sOo[1]}, s{sOo[0]}, {288*256}")
    k(f"s_cmp_lt_u32 s{sG}, 16"); k("s_cbranch_scc1 k1_qk1")
    body(k, 0, False, WTF, "qk0", prof, opt)
    k("s_branch k1_fin")
    k("k1_qk1:")
    body(k, 1, False, WTF, "qk1", prof, opt)
    k("k1_fin:")
    if prof:
        marks_out(k, MARKS, stamp, s0=88 if opt.get('rt') else 90)
        k("s_waitcnt vmcnt(0)")
        stamp_end(k, vt=20, kidx=stamp)
    k("k1_end:"); k("s_endpgm")
    rep = finish(k)
    return k, rep
if __name__ == "__main__":
    k, rep = make_k1(1)
    for r in rep[:60]: print(r)
    emit([k], "t.s")
```

```python
from common import *
SLOT = 40960
K2_LDS = 4 * SLOT
MARKS = [66, 68, 70, 72, 74, 76, 78, 80, 82]

def gemm_mma(k, WTF, prof, opt):
    ACC = 16
    FR = [112, 152]
    vB = [2, 3]; vZ = [4, 5, 6, 7]
    sH = 8; sBS = 12
    def mark(i):
        if prof: k(f"{'s_memrealtime' if opt.get('rt') else 's_memtime'} s[{MARKS[i]}:{MARKS[i]+1}]")
    k("s_and_b32 s43, s40, 1"); k("s_lshr_b32 s44, s40, 1")
    k("v_and_b32 v8, 15, v1")
    k("s_lshl_b32 s45, s41, 7"); k("s_lshl_b32 s46, s43, 6"); k("s_add_u32 s45, s45, s46"); k("s_lshl_b32 s46, s45, 1")
    k("v_lshlrev_b32 v9, 1, v8")
    k("s_waitcnt lgkmcnt(0)")
    k.srd(sBS, 70, 4096)
    for tb in range(4): k(f"buffer_load_ushort v{12+tb}, v9, s[{sBS}:{sBS+3}], s46 offen offset:{32*tb}")
    k.srd(sH, 74, Z_SZ, off=H)
    k("v_lshrrev_b32 v9, 4, v1"); k("v_bfe_u32 v10, v1, 1, 3"); k("v_xor_b32 v9, v9, v10"); k("v_lshlrev_b32 v9, 4, v9")
    k("v_lshl_add_u32 v9, v8, 7, v9"); k("s_lshl_b32 s46, s43, 13"); k(f"v_add_u32 v{vB[0]}, s46, v9"); k(f"v_xor_b32 v{vB[1]}, 64, v{vB[0]}")
    k("v_lshrrev_b32 v9, 5, v1"); k("v_mul_u32_u24 v9, 6144, v9")
    k("v_and_b32 v10, 3, v1"); k("v_lshl_add_u32 v9, v10, 8, v9")
    k("v_bfe_u32 v10, v1, 4, 1"); k("v_lshlrev_b32 v10, 3, v10"); k("v_bfe_u32 v11, v1, 2, 2"); k("v_add_u32 v10, v10, v11")
    k("v_bfe_u32 v11, v1, 1, 1"); k("v_lshlrev_b32 v11, 2, v11"); k("v_xor_b32 v10, v10, v11"); k("v_lshl_add_u32 v9, v10, 4, v9")
    k("v_and_b32 v10, 1, v1"); k("v_lshl_add_u32 v9, v10, 3, v9")
    k("s_mul_i32 s46, s44, 3072"); k("s_add_u32 s46, s46, 16384"); k(f"v_add_u32 v{vZ[0]}, s46, v9")
    k(f"v_xor_b32 v{vZ[1]}, 8, v{vZ[0]}"); k(f"v_xor_b32 v{vZ[2]}, 64, v{vZ[0]}"); k(f"v_xor_b32 v{vZ[3]}, 72, v{vZ[0]}")
    k("s_waitcnt vmcnt(0)")
    for tb in range(4):
        k(f"v_lshlrev_b32 v{12+tb}, 16, v{12+tb}"); k(f"v_mul_f32 v{12+tb}, {fbits(1.0/KAPPA)}, v{12+tb}")
    for a in range(6):
        for b in range(4):
            for r in range(4): k(f"v_mov_b32 v{ACC+4*(a*4+b)+r}, v{12+b}")
    def reads(ks, st):
        o = []
        f = FR[st]
        for b in range(4): o.append(f"ds_read_b128 v[{f+24+4*b}:{f+24+4*b+3}], v{vB[ks]} offset:{b*2048}")
        for a in range(6):
            p, xy = a // 2, a % 2
            for jj in range(2):
                o.append(f"ds_read_b64_tr_b16 v[{f+4*a+2*jj}:{f+4*a+2*jj+1}], v{vZ[jj*2+xy]} offset:{(12*ks+p)*1024}")
        return o
    def half(st, extra):
        f = FR[st]; e = list(extra); n = 0
        for a in range(6):
            for b in (range(4) if a % 2 == 0 else range(3, -1, -1)):
                c = ACC + 4 * (a * 4 + b)
                k(f"v_mfma_f32_16x16x32_bf16 v[{c}:{c+3}], v[{f+4*a}:{f+4*a+3}], v[{f+24+4*b}:{f+24+4*b+3}], v[{c}:{c+3}]")
                if e: k(e.pop(0))
                n += 1
        assert not e
    mark(0)
    k("s_barrier")
    mark(1)
    for r in reads(0, 0): k(r)
    k("s_mov_b32 s47, 0")
    k("k2_ml:")
    k("s_waitcnt lgkmcnt(0)")
    adv = ["s_add_u32 s47, s47, 1", "s_and_b32 s48, s47, 3", "s_cmp_eq_u32 s48, 0", f"s_cselect_b32 s48, {(-3*SLOT) & 0xffffffff}, s49"]
    half(0, reads(1, 1) + adv + [f"v_add_u32 v{vB[0]}, s48, v{vB[0]}", f"v_add_u32 v{vB[1]}, s48, v{vB[1]}"] + [f"v_add_u32 v{vZ[0]}, s48, v{vZ[0]}", f"v_add_u32 v{vZ[1]}, s48, v{vZ[1]}"])
    k(f"v_add_u32 v{vZ[2]}, s48, v{vZ[2]}"); k(f"v_add_u32 v{vZ[3]}, s48, v{vZ[3]}")
    k("s_waitcnt lgkmcnt(0)")
    k("s_barrier")
    half(1, reads(0, 0) + ["s_cmp_lt_u32 s47, 32"])
    k("s_cbranch_scc1 k2_ml")
    mark(2)
    k("v_lshlrev_b32 v8, 4, v1")
    k("s_mul_i32 s46, s43, 12288"); k("s_mul_i32 s48, s44, 3072"); k("s_add_u32 s46, s46, s48"); k("v_add_u32 v9, s46, v8")
    k("s_waitcnt lgkmcnt(0)")
    ZR = 112
    for b in range(4):
        for p in range(3):
            i = b * 3 + p
            k(f"ds_read_b128 v[{ZR+4*i}:{ZR+4*i+3}], v9 offset:{(b%2)*SLOT + (b//2)*6144 + p*1024}")
    k("s_lshl_b32 s46, s41, 3"); k("s_lshl_b32 s48, s43, 2"); k("s_add_u32 s46, s46, s48"); k("s_mul_i32 s46, s46, 72")
    k("s_mul_i32 s48, s42, 6"); k("s_add_u32 s46, s46, s48"); k("s_mul_i32 s48, s44, 3"); k("s_add_u32 s46, s46, s48"); k("s_lshl_b32 s46, s46, 10")
    k("s_mov_b32 s50, 0xffff0000")
    T = 160
    for b in range(4):
        for p in range(3):
            i = b * 3 + p; z = ZR + 4 * i; t = T + 8 * (i % 2)
            k(f"s_waitcnt lgkmcnt({11 - i})")
            for d in range(4):
                k(f"v_lshlrev_b32 v{t+2*d}, 16, v{z+d}"); k(f"v_and_b32 v{t+2*d+1}, s50, v{z+d}")
            for d in range(4):
                c = ACC + 4 * ((2 * p + d // 2) * 4 + b) + 2 * (d % 2)
                k(f"v_pk_mul_f32 v[{t+2*d}:{t+2*d+1}], v[{t+2*d}:{t+2*d+1}], v[{c}:{c+1}]")
            for d in range(4): k(f"v_cvt_pk_bf16_f32 v{z+d}, v{t+2*d}, v{t+2*d+1}")
            k(f"buffer_store_dwordx4 v[{z}:{z+3}], v8, s[{sH}:{sH+3}], s46 offen offset:{p*1024} {WTF}")
        if b < 3: k(f"s_add_u32 s46, s46, {72*1024}")
    mark(3)

def gemm_load(k, opt):
    sWS, sZ, sZ1 = 8, 12, 16
    vW = [2, 3, 4, 5]; vZs = 6
    k("v_lshrrev_b32 v8, 3, v1"); k("s_lshl_b32 s43, s40, 5"); k("v_add_u32 v8, s43, v8"); k("v_lshlrev_b32 v8, 12, v8")
    k("v_and_b32 v9, 7, v1"); k("v_lshrrev_b32 v10, 4, v1"); k("v_xor_b32 v9, v9, v10")
    k(f"v_lshl_add_u32 v{vW[0]}, v9, 4, v8")
    k("v_xor_b32 v9, 4, v9"); k(f"v_lshl_add_u32 v{vW[1]}, v9, 4, v8"); k(f"v_add_u32 v{vW[1]}, {8*4096-1024}, v{vW[1]}")
    k(f"v_add_u32 v{vW[2]}, {16*4096-2048}, v{vW[0]}"); k(f"v_add_u32 v{vW[3]}, {16*4096-2048}, v{vW[1]}")
    k("v_lshrrev_b32 v9, 5, v1"); k("v_lshlrev_b32 v9, 2, v9"); k("v_xor_b32 v9, v9, v1"); k(f"v_lshlrev_b32 v{vZs}, 4, v9")
    k("v_lshlrev_b32 v7, 4, v1")
    k("s_lshl_b32 s44, s41, 19")
    k("s_mul_i32 s45, s40, 72"); k("s_mul_i32 s46, s42, 6"); k("s_add_u32 s45, s45, s46"); k("s_lshl_b32 s45, s45, 10")
    k("s_lshl_b32 s47, s40, 12")
    k("s_mul_i32 s48, s40, 6144"); k("s_add_u32 s48, s48, 16384")
    k("s_mov_b32 s50, 0")
    k("s_waitcnt lgkmcnt(0)")
    k.srd(sWS, 68, 2048 * 2048 * 2); k.srd(sZ, 74, Z_SZ, off=Z2N); k.srd(sZ1, 74, Z_SZ, off=Z1)
    def tile():
        k("s_add_u32 m0, s47, s50")
        k("s_add_u32 s51, s45, 4096")
        for i in range(4): k(f"buffer_load_dwordx4 v{vW[i]}, s[{sWS}:{sWS+3}], s44 offen offset:{i*1024} lds")
        k("s_add_u32 m0, s48, s50")
        k("s_add_u32 s44, s44, 128")
        for i in range(4): k(f"buffer_load_dwordx4 v{vZs}, s[{sZ}:{sZ+3}], s45 offen offset:{i*1024} lds")
        k("s_add_u32 m0, m0, 4096")
        k(f"s_add_u32 s45, s45, {4*72*1024}")
        for i in range(2): k(f"buffer_load_dwordx4 v{vZs}, s[{sZ}:{sZ+3}], s51 offen offset:{i*1024} lds")
        k(f"s_add_u32 s50, s50, {SLOT}"); k(f"s_cmp_eq_u32 s50, {4*SLOT}"); k("s_cselect_b32 s50, 0, s50")
    k("s_mov_b32 s52, 0")
    k("k2_lp:")
    tile()
    k("s_add_u32 s52, s52, 1"); k("s_cmp_lt_u32 s52, 3"); k("s_cbranch_scc1 k2_lp")
    k("s_waitcnt vmcnt(20)")
    k("s_barrier")
    k("s_cmp_lt_u32 s52, 32"); k("s_cbranch_scc1 k2_lp")
    k("s_lshl_b32 s45, s41, 3"); k("s_lshl_b32 s46, s40, 1"); k("s_add_u32 s45, s45, s46"); k("s_mul_i32 s45, s45, 72")
    k("s_mul_i32 s46, s42, 6"); k("s_add_u32 s45, s45, s46"); k("s_lshl_b32 s45, s45, 10")
    k("s_mul_i32 s48, s40, 6144")
    for par in range(2):
        k(f"s_add_u32 m0, s48, {par*SLOT}")
        k("s_add_u32 s51, s45, 4096")
        for i in range(4): k(f"buffer_load_dwordx4 v7, s[{sZ1}:{sZ1+3}], s45 offen offset:{i*1024} lds")
        k("s_add_u32 m0, m0, 4096")
        k(f"s_add_u32 s45, s45, {72*1024}")
        for i in range(2): k(f"buffer_load_dwordx4 v7, s[{sZ1}:{sZ1+3}], s51 offen offset:{i*1024} lds")
        k(f"s_waitcnt vmcnt({16 if par == 0 else 12})")
        k("s_barrier")
    k("s_waitcnt vmcnt(0)")
    k("s_barrier")

def make_k2(stamp=None, wt=True, opt={}, attn=None):
    WTF = "sc1" if wt else ""
    prof = stamp is not None
    k = K("k2_kernel", 256, 512, K2_LDS, vgpr=256)
    k("s_load_dwordx4 s[68:71], s[0:1], 40")
    k("s_load_dwordx2 s[74:75], s[0:1], 80")
    k("s_cmp_ge_u32 s2, 256"); k("s_cbranch_scc1 k2_end")
    if prof: stamp_begin(k)
    k("v_lshrrev_b32 v2, 6, v0"); k("v_and_b32 v1, 63, v0"); k("v_readfirstlane_b32 s40, v2")
    k("s_and_b32 s43, s2, 7"); k("s_lshr_b32 s44, s2, 3")
    k("s_cmp_ge_u32 s44, 24"); k("s_cbranch_scc1 k2_attn")
    k("s_and_b32 s41, s43, 1"); k("s_lshl_b32 s41, s41, 3"); k("s_and_b32 s45, s44, 7"); k("s_add_u32 s41, s41, s45")
    k("s_lshr_b32 s42, s43, 1"); k("s_mul_i32 s42, s42, 3"); k("s_lshr_b32 s45, s44, 3"); k("s_add_u32 s42, s42, s45")
    k(f"s_mov_b32 s49, {SLOT}")
    k("s_cmp_ge_u32 s40, 4"); k("s_cbranch_scc1 k2_load")
    if opt.get('prio'): k("s_setprio 1")
    gemm_mma(k, WTF, prof, opt)
    k("s_branch k2_fin")
    k("k2_load:")
    k("s_sub_u32 s40, s40, 4")
    gemm_load(k, opt)
    k("s_endpgm")
    k("k2_attn:")
    if attn: attn(k, WTF, prof, opt)
    else: k("s_endpgm")
    k("k2_fin:")
    if prof:
        marks_out(k, MARKS, stamp, s0=88 if opt.get('rt') else 90)
        k("s_waitcnt vmcnt(0)")
        stamp_end(k, vt=20, kidx=stamp)
    k("k2_end:"); k("s_endpgm")
    rep = finish(k)
    return k, rep
if __name__ == "__main__":
    k, rep = make_k2(2)
    for r in rep[:60]: print(r)
    emit([k], "t.s")
```

```python
from common import *
MARKS = [66, 68, 70, 72, 74, 76, 78, 80, 82]
OOB = 0x7ffffff0
def make_k3(stamp=None, opt={}):
    prof = stamp is not None
    k = K("k3_kernel", 256, 320, 102400, vgpr=224)
    def mark(i):
        if prof: k(f"{'s_memrealtime' if opt.get('rt') else 's_memtime'} s[{MARKS[i]}:{MARKS[i]+1}]")
    S = Sched(k)
    sA, sB, sX, sOUT = 8, 12, 16, 20
    ACC = 32; FB = 112
    DEP = opt.get('dep3', 2)
    NB = DEP + 1
    k("s_load_dwordx2 s[60:61], s[0:1], 80")
    k("s_load_dwordx2 s[62:63], s[0:1], 0")
    k("s_load_dwordx2 s[64:65], s[0:1], 64")
    k("s_cmp_ge_u32 s2, 256"); k("s_cbranch_scc1 k3_end")
    if prof: stamp_begin(k)
    k("v_lshrrev_b32 v2, 6, v0"); k("v_and_b32 v1, 63, v0"); k("v_readfirstlane_b32 s40, v2")
    k("s_and_b32 s43, s2, 7"); k("s_lshr_b32 s44, s2, 3")
    k("s_and_b32 s41, s43, 3"); k("s_lshl_b32 s41, s41, 3"); k("s_and_b32 s45, s44, 7"); k("s_add_u32 s41, s41, s45")
    k("s_lshr_b32 s42, s43, 2"); k("s_lshl_b32 s42, s42, 2"); k("s_lshr_b32 s45, s44, 3"); k("s_add_u32 s42, s42, s45")
    k("v_lshlrev_b32 v3, 4, v1")
    k("s_cmp_lt_u32 s40, 4")
    k("s_cselect_b32 s46, 73728, s46"); k("s_cselect_b32 s46, s46, 18432")
    k(f"s_cselect_b32 s47, {H}, s47"); k(f"s_cselect_b32 s47, s47, {O}")
    k(f"s_cselect_b32 s{sB+2}, {Z_SZ}, s{sB+2}"); k(f"s_cselect_b32 s{sB+2}, s{sB+2}, {O_SZ}")
    k("s_mul_i32 s48, s40, 18432"); k("s_cselect_b32 s48, s48, 0")
    k("s_mul_i32 s49, s41, s46"); k("s_lshl_b32 s49, s49, 2"); k("s_add_u32 s48, s48, s49")
    k("v_add_u32 v4, s46, v3"); k("v_add_u32 v5, s46, v4"); k("v_add_u32 v6, s46, v5")
    k("s_mul_i32 s49, s42, 90"); k("s_mul_i32 s50, s40, 18"); k("s_add_u32 s49, s49, s50"); k("s_mul_i32 s49, s49, 4608")
    k("v_lshrrev_b32 v8, 4, v1"); k("v_and_b32 v9, 15, v1"); k("v_lshlrev_b32 v7, 3, v8"); k("v_add_u32 v7, v7, v9"); k("v_lshlrev_b32 v7, 4, v7"); k("v_add_u32 v7, 4096, v7")
    k(f"v_mov_b32 v10, {OOB}"); k("v_cmp_gt_u32 vcc, 8, v9"); k("v_cndmask_b32 v7, v10, v7, vcc")
    k("s_waitcnt lgkmcnt(0)")
    k.srd(sA, 60, WT_SZ, off=WT)
    k(f"s_add_u32 s{sB}, s60, s47"); k(f"s_addc_u32 s{sB+1}, s61, 0"); k(f"s_mov_b32 s{sB+3}, 0x20000")
    mark(0)
    def loads(ks):
        f = FB + 36 * (ks % NB)
        o = []
        seq = [('b', 0), ('a', 0), ('a', 1), ('b', 1), ('a', 2), ('b', 2), ('a', 3), ('b', 3), ('a', 4)]
        for t, i in seq:
            if t == 'a':
                r = f + 4 * i
                if i < 4: o.append((f"buffer_load_dwordx4 v[{r}:{r+3}], v3, s[{sA}:{sA+3}], s49 offen offset:{i*1024}", ks))
                else: o.append((f"buffer_load_dwordx4 v[{r}:{r+3}], v7, s[{sA}:{sA+3}], s49 offen", ks))
            else:
                r = f + 20 + 4 * i
                o.append((f"buffer_load_dwordx4 v[{r}:{r+3}], v{3+i}, s[{sB}:{sB+3}], s48 offen offset:{(ks%4)*1024}", ks))
        o.append(("s_add_u32 s49, s49, 4608", None))
        if ks % 4 == 3: o.append(("s_add_u32 s48, s48, 4096", None))
        return o
    def put(it):
        if it[1] is None: S(it[0])
        else: S.vmem(it[0], ('L', it[1]))
    for ks in range(DEP):
        for it in loads(ks): put(it)
    k.srd(sX, 62, XN_SZ); k.srd(sOUT, 64, XN_SZ)
    k(f"s_mov_b32 s51, {(2**32 + 8) // 9}")
    k("s_mul_i32 s52, s41, 73728"); k("s_mul_i32 s53, s42, 144"); k("s_add_u32 s52, s52, s53")
    for rd in range(2):
        k(f"v_add_u32 v11, {320*rd}, v0")
        k("v_mul_hi_u32 v12, v11, s51"); k("v_mul_u32_u24 v13, 9, v12"); k("v_sub_u32 v13, v11, v13")
        k(f"v_mul_u32_u24 v{14+rd}, 1152, v12"); k(f"v_lshl_add_u32 v{14+rd}, v13, 4, v{14+rd}")
        k(f"v_lshrrev_b32 v{16+rd}, 1, v13"); k(f"v_lshlrev_b32 v{16+rd}, 2, v{16+rd}"); k("v_lshrrev_b32 v18, 4, v12"); k(f"v_add_u32 v{16+rd}, v{16+rd}, v18")
        k(f"v_lshlrev_b32 v{16+rd}, 10, v{16+rd}"); k("v_and_b32 v18, 1, v13"); k(f"v_lshl_add_u32 v{16+rd}, v18, 9, v{16+rd}")
        k("v_and_b32 v18, 15, v12"); k(f"v_lshl_add_u32 v{16+rd}, v18, 4, v{16+rd}")
        if rd:
            k("v_cmp_gt_u32 vcc, 576, v11"); k("v_cndmask_b32 v15, v10, v15, vcc"); k("v_cndmask_b32 v17, 0, v17, vcc")
    k("s_mul_i32 s53, s40, 20480"); k("v_add_u32 v19, s53, v3")
    for ks in range(18):
        e = loads(ks + DEP) if ks + DEP < 18 else []
        if ks == 18 - DEP:
            e = [(f"buffer_load_dwordx4 v[{20+4*rd}:{23+4*rd}], v{14+rd}, s[{sX}:{sX+3}], s52 offen", 100 + rd) for rd in range(2)]
        f = FB + 36 * (ks % NB)
        S.wait(vm=('L', ks))
        if ks == 0: mark(1)
        n = 0
        for a in range(5):
            for b in range(4):
                c = ACC + 4 * (a * 4 + b)
                k(f"v_mfma_f32_16x16x32_bf16 v[{c}:{c+3}], v[{f+4*a}:{f+4*a+3}], v[{f+20+4*b}:{f+20+4*b+3}], {'0' if ks == 0 else f'v[{c}:{c+3}]'}")
                n += 1
                if e and n % 2 == 1: put(e.pop(0))
        while e: put(e.pop(0))
    mark(2)
    for i in range(20): k(f"ds_write_b128 v19, v[{ACC+4*i}:{ACC+4*i+3}] offset:{i*1024}")
    k("s_waitcnt lgkmcnt(0)")
    k("s_barrier")
    mark(3)
    R = 112
    k(f"v_add_u32 v28, 61440, v16"); k(f"v_add_u32 v29, 61440, v17")
    for rd in range(2):
        for w in range(5):
            for hf in range(2):
                r = R + 40 * rd + 8 * w + 4 * hf
                a, off = (16 + rd, w * 20480) if w < 3 else (28 + rd, (w - 3) * 20480)
                S.lds(f"ds_read_b128 v[{r}:{r+3}], v{a} offset:{off + hf*256}", ('R', rd))
        if rd == 0: pass
    k("s_mov_b32 s54, 0xffff0000"); k(f"s_mov_b32 s56, {fbits(-LOG2E)}")
    for rd in range(2):
        r = R + 40 * rd; T = 32
        S.wait(vm=('L', 100 + rd), lg=('R', rd))
        for j in range(0, 8, 2):
            k(f"v_pk_add_f32 v[{r+j}:{r+j+1}], v[{r+j}:{r+j+1}], v[{r+8+j}:{r+9+j}]")
            k(f"v_pk_add_f32 v[{r+16+j}:{r+17+j}], v[{r+16+j}:{r+17+j}], v[{r+24+j}:{r+25+j}]")
        for j in range(0, 8, 2): k(f"v_pk_add_f32 v[{r+j}:{r+j+1}], v[{r+j}:{r+j+1}], v[{r+16+j}:{r+17+j}]")
        for j in range(0, 8, 2): k(f"v_pk_mul_f32 v[{T+j}:{T+j+1}], v[{r+j}:{r+j+1}], s[56:57] op_sel_hi:[1,0]")
        for j in range(8): k(f"v_exp_f32 v{T+j}, v{T+j}")
        for j in range(0, 8, 2): k(f"v_pk_add_f32 v[{T+j}:{T+j+1}], v[{T+j}:{T+j+1}], 1.0 op_sel_hi:[1,0]")
        for j in range(8): k(f"v_rcp_f32 v{T+j}, v{T+j}")
        for d in range(4):
            k(f"v_lshlrev_b32 v{T+8+2*d}, 16, v{20+4*rd+d}"); k(f"v_and_b32 v{T+9+2*d}, s54, v{20+4*rd+d}")
        for j in range(0, 8, 2): k(f"v_pk_mul_f32 v[{T+j}:{T+j+1}], v[{T+j}:{T+j+1}], v[{r+j}:{r+j+1}]")
        for j in range(0, 8, 2): k(f"v_pk_fma_f32 v[{T+j}:{T+j+1}], v[{T+j}:{T+j+1}], v[{r+32+j}:{r+33+j}], v[{T+8+j}:{T+9+j}]")
        for d in range(4): k(f"v_cvt_pk_bf16_f32 v{20+4*rd+d}, v{T+2*d}, v{T+2*d+1}")
        k(f"buffer_store_dwordx4 v[{20+4*rd}:{23+4*rd}], v{14+rd}, s[{sOUT}:{sOUT+3}], s52 offen")
    mark(4)
    if prof:
        marks_out(k, MARKS, stamp, vt=40, s0=88 if opt.get('rt') else 90)
        k("s_waitcnt vmcnt(0)")
        stamp_end(k, vt=40, kidx=stamp)
    k("k3_end:"); k("s_endpgm")
    rep = finish(k)
    return k, rep
```

```python
import sys, json
from common import *
from k0 import k0
from k1 import make_k1
from k2 import make_k2
opt = json.loads(sys.argv[2]) if len(sys.argv) > 2 else {}
st = (lambda i: i) if opt.get('prof', 1) else (lambda i: None)
try:
    from attn import attn
except ImportError:
    attn = None
ks = [k0(st(0), opt), make_k1(st(1), opt.get('wt', True), opt)[0], make_k2(st(2), opt.get('wt2', True), opt, attn if opt.get('attn', 1) else None)[0]]
try:
    from k3 import make_k3
    ks.append(make_k3(st(3), opt)[0])
except ImportError:
    pass
emit(ks[:opt.get('n', 9)], sys.argv[1])
```
